```python
import torch

def _softmax(x, axis=-1):
    return torch.softmax(x, dim=axis)
def _gelu(x):
    return torch.nn.functional.gelu(x, approximate="tanh")
def _silu(x):
    return torch.nn.functional.silu(x)
def _sigmoid(x):
    return torch.sigmoid(x)
def _layernorm(x, axis=-1, eps=1e-5):
    m = x.mean(dim=axis, keepdim=True)
    v = x.var(dim=axis, keepdim=True, unbiased=False)
    return (x - m) / torch.sqrt(v + eps)
def _scatter_add(tgt, idx, src, axis=0):
    return tgt.clone().index_add_(axis, idx, src)
def _segment_sum(src, seg, n):
    out = torch.zeros((n,) + src.shape[1:], dtype=src.dtype)
    return out.index_add_(0, seg, src)
def _pad(x, pw):
    flat = tuple(v for pair in reversed(pw) for v in pair)
    return torch.nn.functional.pad(x, flat)

kernel_name = 'gated_mix__softmax_full_mha__softmax_full_mha__prompt'

def setup_inputs():

    _w = (lambda a: (lambda t: t.to(torch.bfloat16) if t.is_floating_point() else t)(torch.as_tensor(a)))
    def _A_setup():
        B, S, D = 1, 2048, 512
        return {
            "x": _w((lambda *s: torch.randn(*s, dtype=torch.bfloat16) * 0.05)(B, S, D)),
            "wqkv": _w((lambda *s: torch.randn(*s, dtype=torch.bfloat16) * 0.8)(D, 3 * D)),
            "wo": _w((lambda *s: torch.randn(*s, dtype=torch.bfloat16) * 0.05)(D, D)),
        }
    _A_in = _A_setup()

    def _B_setup():
        B, S, D = 1, 2048, 512
        return {
            "x": _w((lambda *s: torch.randn(*s, dtype=torch.bfloat16) * 0.05)(B, S, D)),
            "wqkv": _w((lambda *s: torch.randn(*s, dtype=torch.bfloat16) * 0.8)(D, 3 * D)),
            "wo": _w((lambda *s: torch.randn(*s, dtype=torch.bfloat16) * 0.05)(D, D)),
        }
    _B_in = _B_setup()

    return {
        "A_x": _A_in["x"],
        "A_wqkv": _A_in["wqkv"],
        "A_wo": _A_in["wo"],
        "B_x": _B_in["x"],
        "B_wqkv": _B_in["wqkv"],
        "B_wo": _B_in["wo"],
        "gate_w": _w((lambda *s: torch.randn(*s, dtype=torch.bfloat16) * 0.05)(512) * 16.0),
    }

def reference(A_x, A_wqkv, A_wo, B_x, B_wqkv, B_wo, gate_w):
    def _A_ref(x, wqkv, wo):
        B, S, D = x.shape
        H = 32; Dh = D // H
        qkv = (lambda x, *d: x.permute(*d))((x @ wqkv).reshape(B, S, 3, H, Dh), 2, 0, 3, 1, 4)
        q, k, v = qkv[0], qkv[1], qkv[2]
        scale = Dh ** -0.5
        scores = torch.einsum("bhqd,bhkd->bhqk", q, k) * scale
        p = _softmax(scores, axis=-1)
        o = torch.einsum("bhqk,bhkd->bhqd", p, v)
        return (lambda x, *d: x.permute(*d))(o, 0, 2, 1, 3).reshape(B, S, D) @ wo

    def _B_ref(x, wqkv, wo):
        B, S, D = x.shape
        H = 32; Dh = D // H
        qkv = (lambda x, *d: x.permute(*d))((x @ wqkv).reshape(B, S, 3, H, Dh), 2, 0, 3, 1, 4)
        q, k, v = qkv[0], qkv[1], qkv[2]
        scale = Dh ** -0.5
        scores = torch.einsum("bhqd,bhkd->bhqk", q, k) * scale
        p = _softmax(scores, axis=-1)
        o = torch.einsum("bhqk,bhkd->bhqd", p, v)
        return (lambda x, *d: x.permute(*d))(o, 0, 2, 1, 3).reshape(B, S, D) @ wo

    x = A_x
    g = _sigmoid((x * gate_w).sum(-1, keepdims=True))
    a = _A_ref(x, A_wqkv, A_wo)
    b = _B_ref(x, B_wqkv, B_wo)
    return g * a + (1 - g) * b
```

```python
import sys
NAME = "gated_mix__softmax_full_mha__softmax_full_mha__prompt"
KV_OFF, Q_OFF, O_OFF, G_OFF = 0, 8 << 20, 12 << 20, 16 << 20
WS_BYTES = G_OFF + 8192
QSCALE = 0x3EB8AA3B
LOG2E = 0x3FB8AA3B

class Asm:
    def __init__(self): self.L = []
    def __call__(self, s):
        for x in s.strip("\n").split("\n"):
            x = x.strip()
            if not x: continue
            self.L.append(x if x.endswith(":") or x.startswith(".") else "    " + x)
    def text(self): return "\n".join(self.L) + "\n"

def vr(a, n): return f"v[{a}:{a+n-1}]"

def srd(a, d, lo, nbytes):
    a(f"s_mov_b32 s{d}, s{lo}\ns_mov_b32 s{d+1}, s{lo+1}\ns_mov_b32 s{d+2}, {hex(nbytes)}\ns_mov_b32 s{d+3}, 0x00020000")

def head(a, label):
    a(f".globl {label}\n.p2align 8\n.type {label},@function\n{label}:")

def desc(label, nv):
    acc = (nv + 3) // 4 * 4
    return f""".p2align 6
.amdhsa_kernel {label}
  .amdhsa_next_free_vgpr {nv}
  .amdhsa_next_free_sgpr 102
  .amdhsa_accum_offset {acc}
  .amdhsa_group_segment_fixed_size 0
  .amdhsa_kernarg_size 80
  .amdhsa_user_sgpr_count 2
  .amdhsa_user_sgpr_kernarg_segment_ptr 1
  .amdhsa_system_sgpr_workgroup_id_x 1
.end_amdhsa_kernel
"""

def k1(a):
    lab = "qkv_kernel"
    head(a, lab)
    a("""
    s_cmp_ge_u32 s2, 256
    s_cbranch_scc1 K1_END
    s_load_dwordx4 s[4:7], s[0:1], 0
    s_load_dwordx2 s[8:9], s[0:1], 32
    s_load_dwordx2 s[10:11], s[0:1], 48
    s_load_dwordx2 s[12:13], s[0:1], 72
    v_lshrrev_b32 v1, 6, v0
    v_and_b32 v0, 63, v0
    v_readfirstlane_b32 s16, v1
    s_and_b32 s17, s2, 7
    s_lshr_b32 s18, s2, 3
    s_and_b32 s19, s18, 1
    s_lshl_b32 s17, s17, 1
    s_add_u32 s17, s17, s19
    s_lshr_b32 s18, s18, 1
    s_and_b32 s19, s17, 7
    s_cmp_ge_u32 s17, 8
    s_waitcnt lgkmcnt(0)
    s_cselect_b32 s6, s8, s6
    s_cselect_b32 s7, s9, s7
    """)
    srd(a, 20, 4, 2048 * 1024)
    srd(a, 24, 6, 512 * 3072)
    srd(a, 28, 12, WS_BYTES)
    a("s_cmp_ge_u32 s16, 4\ns_cbranch_scc1 K1_LOADER")
    ACC = 32
    FR = [128, 148]
    a("""
    s_lshr_b32 s32, s16, 1
    s_and_b32 s33, s16, 1
    v_and_b32 v1, 31, v0
    v_lshrrev_b32 v2, 5, v0
    v_bfe_u32 v3, v0, 1, 3
    v_lshlrev_b32 v4, 7, v1
    s_lshl_b32 s34, s32, 13
    v_add_u32 v4, s34, v4
    """)
    for s in range(4):
        a(f"v_add_u32 v5, {2*s}, v2\nv_xor_b32 v5, v5, v3\nv_lshl_add_u32 v{8+s}, v5, 4, v4")
    a("""
    v_bfe_u32 v5, v0, 2, 2
    v_lshl_add_u32 v6, v2, 3, v5
    v_lshlrev_b32 v6, 7, v6
    v_lshrrev_b32 v5, 1, v5
    v_xor_b32 v5, s33, v5
    v_lshl_add_u32 v6, v5, 6, v6
    v_bfe_u32 v5, v0, 4, 1
    v_lshl_add_u32 v6, v5, 5, v6
    v_and_b32 v5, 3, v0
    v_lshl_add_u32 v6, v5, 3, v6
    v_add_u32 v12, 0x10000, v6
    v_add_u32 v13, 0x1c000, v6
    """)
    a(f"""
    s_lshl_b32 s35, s17, 2
    s_lshl_b32 s36, s33, 1
    s_add_u32 s35, s35, s36
    s_lshl_b32 s36, s18, 2
    s_lshl_b32 s37, s32, 1
    s_add_u32 s36, s36, s37
    s_lshl_b32 s38, s35, 16
    s_lshl_b32 s39, s36, 10
    s_add_u32 s38, s38, s39
    s_add_u32 s38, s38, {hex(Q_OFF)}
    s_lshl_b32 s40, s35, 17
    s_lshl_b32 s39, s36, 11
    s_add_u32 s40, s40, s39
    v_lshlrev_b32 v14, 4, v0
    v_and_b32 v5, 0x33, v0
    v_bfe_u32 v6, v0, 2, 1
    v_lshl_or_b32 v5, v6, 3, v5
    v_bfe_u32 v6, v0, 3, 1
    v_lshl_or_b32 v5, v6, 2, v5
    v_lshlrev_b32 v15, 4, v5
    v_and_b32 v5, 15, v0
    v_lshlrev_b32 v5, 4, v5
    v_lshl_add_u32 v5, v2, 8, v5
    v_bfe_u32 v6, v0, 4, 1
    v_lshl_add_u32 v16, v6, 17, v5
    """)
    def reads(c, s, buf):
        f = FR[buf]; slot = c % 4
        xo = slot * 16384
        wreg = 12 + (slot >> 1); wo = (slot & 1) * 24576 + s * 2048
        R = [f"ds_read_b128 {vr(f,4)}, v{8+s} offset:{xo}"]
        R += [f"ds_read_b64_tr_b16 {vr(f+8+2*e,2)}, v{wreg} offset:{wo+e*512}" for e in range(2)]
        R += [f"ds_read_b128 {vr(f+4,4)}, v{8+s} offset:{xo+4096}"]
        R += [f"ds_read_b64_tr_b16 {vr(f+12+2*e,2)}, v{wreg} offset:{wo+8192+e*512}" for e in range(2)]
        R += [f"ds_read_b64_tr_b16 {vr(f+16+2*e,2)}, v{wreg} offset:{wo+16384+e*512}" for e in range(2)]
        return R
    a("s_barrier")
    for r in reads(0, 0, 0): a(r)
    for n in range(32):
        c, s = divmod(n, 4)
        f = FR[n & 1]
        M = []
        for part in range(3):
            for b in range(2):
                d = ACC + 16 * (2 * part + b)
                x = vr(f + 4 * b, 4); w = vr(f + 8 + 4 * part, 4)
                A, B = (w, x) if part < 2 else (x, w)
                M.append(f"v_mfma_f32_32x32x16_bf16 {vr(d,16)}, {A}, {B}, {vr(d,16) if n else 0}")
        R = reads(*divmod(n + 1, 4), (n + 1) & 1) if n < 31 else []
        a("s_waitcnt lgkmcnt(0)")
        a(M[0])
        if s == 3 and n < 31: a("s_barrier")
        grp = [R[0:3], R[3:6], R[6:8], [], []]
        for i in range(5):
            for r in grp[i]: a(r)
            a(M[i + 1])
    a(f"s_mov_b32 s41, {hex(QSCALE)}\ns_nop 6")
    T = 128
    for b in range(2):
        d = ACC + 16 * b
        for r in range(16): a(f"v_mul_f32 v{d+r}, s41, v{d+r}")
        for hd in range(2):
            t = T + 8 * b + 4 * hd
            for i in range(4): a(f"v_cvt_pk_bf16_f32 v{t+i}, v{d+8*hd+2*i}, v{d+8*hd+2*i+1}")
            a(f"s_add_u32 s42, s38, {hd*65536 + b*1024}")
            a(f"buffer_store_dwordx4 {vr(t,4)}, v14, s[28:31], s42 offen")
    for b in range(2):
        d = ACC + 32 + 16 * b
        for hd in range(2):
            t = T + 16 + 8 * b + 4 * hd
            for i in range(4): a(f"v_cvt_pk_bf16_f32 v{t+i}, v{d+8*hd+2*i}, v{d+8*hd+2*i+1}")
            a(f"s_add_u32 s42, s40, {hd*131072 + b*2048}")
            a(f"buffer_store_dwordx4 {vr(t,4)}, v15, s[28:31], s42 offen")
    for b in range(2):
        d = ACC + 64 + 16 * b
        for m in range(2):
            t = ACC + 8 * b + 4 * m
            for i in range(4): a(f"v_cvt_pk_bf16_f32 v{t+i}, v{d+8*m+2*i}, v{d+8*m+2*i+1}")
            a(f"s_add_u32 s42, s40, {b*2048 + 1024 + m*512}")
            a(f"buffer_store_dwordx4 {vr(t,4)}, v16, s[28:31], s42 offen")
    a("s_endpgm")
    a("""
    K1_LOADER:
    s_sub_u32 s32, s16, 4
    v_lshrrev_b32 v1, 3, v0
    v_and_b32 v2, 7, v0
    v_lshrrev_b32 v3, 4, v0
    s_and_b32 s33, s32, 1
    s_lshl_b32 s33, s33, 2
    v_add_u32 v4, s33, v3
    v_xor_b32 v4, v4, v2
    v_lshlrev_b32 v4, 4, v4
    v_lshl_add_u32 v4, v1, 10, v4
    v_and_b32 v3, 1, v3
    v_lshlrev_b32 v3, 2, v3
    v_xor_b32 v3, v3, v2
    v_lshlrev_b32 v3, 4, v3
    v_mul_u32_u24 v5, 3072, v1
    v_add_u32 v5, v5, v3
    s_lshl_b32 s34, s18, 17
    s_lshl_b32 s35, s32, 13
    s_add_u32 s34, s34, s35
    s_mul_i32 s35, s32, 24576
    s_lshl_b32 s36, s19, 7
    s_add_u32 s35, s35, s36
    s_lshl_b32 s36, s32, 10
    """)
    def chunk(c):
        slot = c % 4
        for i in range(6):
            a(f"s_add_u32 m0, s36, {65536 + slot*24576 + i*4096}")
            a(f"s_add_u32 s37, s35, {(i&1)*32*3072 + (i>>1)*1024 + c*64*3072}")
            a("buffer_load_dwordx4 v5, s[24:27], s37 offen lds")
            if i < 4:
                a(f"s_add_u32 m0, s36, {slot*16384 + i*4096}")
                a(f"s_add_u32 s37, s34, {i*32768 + c*128}")
                a("buffer_load_dwordx4 v4, s[20:23], s37 offen lds")
    for c in range(4): chunk(c)
    a("s_waitcnt vmcnt(30)\ns_barrier\ns_waitcnt vmcnt(20)\ns_barrier")
    for c in range(4, 8):
        chunk(c)
        if c < 7: a("s_waitcnt vmcnt(20)\ns_barrier")
    srd(a, 40, 10, 1024)
    a("""
    v_lshlrev_b32 v1, 4, v0
    s_lshl_b32 s37, s2, 3
    s_lshl_b32 s38, s32, 1
    s_add_u32 s37, s37, s38
    s_lshl_b32 s38, s37, 10
    buffer_load_dwordx4 v[8:11], v1, s[40:43], 0 offen
    buffer_load_dwordx4 v[12:15], v1, s[20:23], s38 offen
    buffer_load_dwordx4 v[16:19], v1, s[20:23], s38 offen offset:1024
    s_waitcnt vmcnt(23)
    s_barrier
    s_waitcnt vmcnt(13)
    s_barrier
    s_waitcnt vmcnt(3)
    s_barrier
    s_waitcnt vmcnt(0)
    """)
    for i in range(4):
        a(f"v_lshlrev_b32 v{20+2*i}, 16, v{8+i}\nv_and_b32 v{21+2*i}, 0xffff0000, v{8+i}")
    for r in range(2):
        for i in range(4):
            a(f"v_lshlrev_b32 v28, 16, v{12+4*r+i}\nv_and_b32 v29, 0xffff0000, v{12+4*r+i}")
            a(f"v_mul_f32 v{30+r}, v28, v{20+2*i}" if i == 0 else f"v_fmac_f32 v{30+r}, v28, v{20+2*i}")
            a(f"v_fmac_f32 v{30+r}, v29, v{21+2*i}")
    for d in ("quad_perm:[1,0,3,2] row_mask:0xf", "quad_perm:[2,3,0,1] row_mask:0xf", "row_half_mirror row_mask:0xf",
              "row_mirror row_mask:0xf", "row_bcast:15 row_mask:0xa", "row_bcast:31 row_mask:0xc"):
        a("s_nop 1")
        a(f"v_add_f32_dpp v30, v30, v30 {d} bank_mask:0xf\nv_add_f32_dpp v31, v31, v31 {d} bank_mask:0xf")
    a(f"""
    v_mul_f32 v30, {hex(LOG2E | 0x80000000)}, v30
    v_mul_f32 v31, {hex(LOG2E | 0x80000000)}, v31
    v_exp_f32 v30, v30
    v_exp_f32 v31, v31
    s_nop 0
    v_add_f32 v30, 1.0, v30
    v_add_f32 v31, 1.0, v31
    v_rcp_f32 v30, v30
    v_rcp_f32 v31, v31
    s_lshl_b32 s38, s37, 2
    s_add_u32 s38, s38, {hex(G_OFF)}
    v_mov_b32 v1, 0
    v_cmp_eq_u32 vcc, 63, v0
    s_and_saveexec_b64 s[44:45], vcc
    buffer_store_dwordx2 v[30:31], v1, s[28:31], s38 offen
    K1_END:
    s_endpgm
    """)
    return lab, 168

SB, OA, QF, KF, VF, CF = 16, 80, 112, 120, 128, 144
POS = (2, 7, 11)
def att_init(a):
    for r in range(VF, VF + 16): a(f"v_mov_b32 v{r}, v13")
    for r in range(OA, OA + 32): a(f"v_mov_b32 v{r}, 0")
    for r in range(SB + 56, SB + 64): a(f"v_mov_b32 v{r}, 0")
    a("v_lshlrev_b32 v9, 4, v0\nv_mov_b32 v10, v14")
def att_start(a, creg):
    a(f"""
    ds_read_b128 {vr(KF,4)}, v9
    ds_read_b128 {vr(KF+4,4)}, v9 offset:2048
    s_mov_b64 exec, s[32:33]
    ds_read_b128 {vr(VF,4)}, v10 offset:1024
    ds_read_b128 {vr(VF+4,4)}, v10 offset:1536
    s_mov_b64 exec, -1
    s_waitcnt lgkmcnt(3)
    """)
    for q in range(2):
        c = vr(CF + 16 * q, 16) if creg else "0"
        a(f"v_mfma_f32_32x32x16_bf16 {vr(SB+16*q,16)}, {vr(KF,4)}, {vr(QF+4*q,4)}, {c}")
    a("s_nop 11")
def att_loop(a, tag, creg, nt=8):
    a(f"s_mov_b32 s40, {64 // nt}\n.p2align 6\n{tag}_LOOP:")
    for j in range(nt):
        kb_n = KF + 4 * ((j + 1) & 1); kb_nn = KF + 4 * (j & 1)
        vb = VF + 8 * (j & 1); vbn = VF + 8 * ((j + 1) & 1)
        for q in range(2):
            n = 2 * j + q
            cur = SB + 16 * (n % 4); prev = SB + 16 * ((n - 1) % 4); nxt = SB + 16 * ((n + 2) % 4)
            oprev = OA + 16 * (1 - q); ocur = OA + 16 * q
            vprev = (vbn if q == 0 else vb) + 4
            c = vr(CF + 16 * q, 16) if creg else "0"
            for e in range(16):
                if e == POS[0]:
                    a(f"v_smfmac_f32_32x32x32_bf16 {vr(oprev,16)}, {vr(vprev,4)}, {vr(prev+8,8)}, v8")
                    if q == 0:
                        a("s_mov_b64 exec, s[32:33]")
                        a(f"ds_read_b128 {vr(vbn,4)}, v10 offset:{(j+1)*2048+1024}")
                        a(f"ds_read_b128 {vr(vbn+4,4)}, v10 offset:{(j+1)*2048+1536}")
                        a("s_mov_b64 exec, -1")
                if e == POS[1]:
                    if q == 0: a("s_waitcnt lgkmcnt(2)")
                    a(f"v_mfma_f32_32x32x16_bf16 {vr(nxt,16)}, {vr(kb_n,4)}, {vr(QF+4*q,4)}, {c}")
                    if q == 1: a(f"ds_read_b128 {vr(kb_nn,4)}, v9 offset:{(j+2)*2048}")
                if e == POS[2]:
                    a(f"v_smfmac_f32_32x32x32_bf16 {vr(ocur,16)}, {vr(vb,4)}, {vr(cur,8)}, v8")
                a(f"v_exp_f32 v{cur+e}, v{cur+e}")
        if j == nt - 2 and not creg:
            a(f"s_cmp_lg_u32 s40, {64 // nt}\ns_cbranch_scc1 {tag}_NOBAR\ns_waitcnt vmcnt(0)\ns_barrier\n{tag}_NOBAR:")
    a(f"""
    v_add_u32 v9, {nt*2048}, v9
    v_add_u32 v10, {nt*2048}, v10
    s_sub_u32 s40, s40, 1
    s_cmp_lg_u32 s40, 0
    s_cbranch_scc1 {tag}_LOOP
    v_smfmac_f32_32x32x32_bf16 {vr(OA+16,16)}, {vr(VF+12,4)}, {vr(SB+56,8)}, v8
    s_waitcnt lgkmcnt(0)
    s_nop 11
    """)

def k2(a):
    lab = "attn_kernel"
    head(a, lab)
    a("""
    s_cmp_ge_u32 s2, 256
    s_cbranch_scc1 K2_END
    s_load_dwordx2 s[12:13], s[0:1], 72
    v_lshrrev_b32 v1, 6, v0
    v_and_b32 v0, 63, v0
    v_readfirstlane_b32 s16, v1
    s_and_b32 s17, s2, 7
    s_lshr_b32 s18, s2, 3
    s_lshl_b32 s17, s17, 3
    s_and_b32 s19, s18, 7
    s_add_u32 s17, s17, s19
    s_lshr_b32 s18, s18, 3
    s_lshl_b32 s18, s18, 4
    s_lshl_b32 s19, s16, 1
    s_add_u32 s18, s18, s19
    v_lshlrev_b32 v9, 4, v0
    v_and_b32 v1, 31, v0
    v_lshlrev_b32 v2, 2, v1
    s_waitcnt lgkmcnt(0)
    """)
    srd(a, 28, 12, WS_BYTES)
    a(f"""
    s_lshl_b32 s34, s17, 16
    s_lshl_b32 s35, s18, 10
    s_add_u32 s34, s34, s35
    s_add_u32 s34, s34, {hex(Q_OFF)}
    s_lshl_b32 s35, s18, 7
    s_add_u32 s35, s35, {hex(G_OFF)}
    s_lshl_b32 s36, s17, 17
    s_lshl_b32 s37, s16, 10
    s_add_u32 s36, s36, s37
    s_mov_b32 m0, s37
    buffer_load_dwordx4 {vr(QF,4)}, v9, s[28:31], s34 offen
    buffer_load_dwordx4 {vr(QF+4,4)}, v9, s[28:31], s34 offen offset:1024
    buffer_load_dwordx4 v9, s[28:31], s36 offen lds
    """)
    for i in range(1, 16):
        a(f"s_add_u32 m0, s37, {i*8192}\ns_add_u32 s38, s36, {i*8192}\nbuffer_load_dwordx4 v9, s[28:31], s38 offen lds")
    a(f"""
    buffer_load_dword v11, v2, s[28:31], s35 offen
    buffer_load_dword v12, v2, s[28:31], s35 offen offset:128
    v_mov_b32 v8, 0xdddddddd
    s_mov_b32 s32, 0x0000ffff
    s_mov_b32 s33, 0x0000ffff
    v_and_b32 v3, 27, v1
    v_mov_b32 v4, 0x3f803f80
    v_cmp_eq_u32 vcc, 16, v3
    v_and_b32 v14, 15, v0
    v_lshlrev_b32 v14, 4, v14
    v_cndmask_b32 v13, 0, v4, vcc
    v_lshrrev_b32 v3, 5, v0
    v_lshl_add_u32 v14, v3, 8, v14
    """)
    att_init(a)
    a("s_waitcnt vmcnt(15)\ns_barrier")
    att_start(a, False)
    att_loop(a, "K2F", False)
    a(f"""
    s_mov_b32 s42, 0x17800000
    s_mov_b32 s43, 0x67800000
    v_mov_b32 v3, 0x207
    v_cmp_lt_f32 vcc, s42, v{OA+8}
    v_cmp_lt_f32 s[44:45], s42, v{OA+24}
    v_cmp_gt_f32 s[46:47], s43, v{OA+8}
    v_cmp_gt_f32 s[48:49], s43, v{OA+24}
    s_and_b64 s[44:45], s[44:45], vcc
    s_and_b64 s[46:47], s[46:47], s[48:49]
    s_and_b64 s[44:45], s[44:45], s[46:47]
    """)
    for q in range(2):
        for r in range(8):
            a(f"v_cmp_class_f32 vcc, v{OA+16*q+r}, v3\ns_nop 0\ns_andn2_b64 s[44:45], s[44:45], vcc")
    a("s_cmp_eq_u64 s[44:45], -1\ns_cbranch_scc0 K2_SLOW\nK2_FIN:")
    a(f"""
    s_lshr_b32 s41, s17, 5
    s_cmp_eq_u32 s41, 0
    s_cselect_b32 s42, 1.0, -1.0
    s_cselect_b32 s43, 0, 1.0
    v_mov_b32 v3, s43
    v_rcp_f32 v4, v{OA+8}
    v_rcp_f32 v5, v{OA+24}
    v_fma_f32 v11, v11, s42, v3
    v_fma_f32 v12, v12, s42, v3
    v_mul_f32 v4, v4, v11
    v_mul_f32 v5, v5, v12
    s_lshl_b32 s34, s18, 16
    s_lshl_b32 s35, s17, 10
    s_add_u32 s34, s34, s35
    s_add_u32 s34, s34, {hex(O_OFF)}
    s_add_u32 s35, s34, 0x10000
    v_lshlrev_b32 v9, 4, v0
    """)
    for q in range(2):
        for r in range(8): a(f"v_mul_f32 v{OA+16*q+r}, v{OA+16*q+r}, v{4+q}")
        for i in range(4): a(f"v_cvt_pk_bf16_f32 v{SB+4*q+i}, v{OA+16*q+2*i}, v{OA+16*q+2*i+1}")
        a(f"buffer_store_dwordx4 {vr(SB+4*q,4)}, v9, s[28:31], s{34+q} offen")
    a("K2_END:\ns_endpgm")
    a(f"""
    K2_SLOW:
    v_lshlrev_b32 v9, 4, v0
    v_mov_b32 v4, 0xff800000
    v_mov_b32 v5, 0xff800000
    s_mov_b32 s40, 64
    K2_MAXLOOP:
    ds_read_b128 {vr(KF,4)}, v9
    v_add_u32 v9, 2048, v9
    s_waitcnt lgkmcnt(0)
    v_mfma_f32_32x32x16_bf16 {vr(SB,16)}, {vr(KF,4)}, {vr(QF,4)}, 0
    v_mfma_f32_32x32x16_bf16 {vr(SB+16,16)}, {vr(KF,4)}, {vr(QF+4,4)}, 0
    s_nop 11
    """)
    for q in range(2):
        for i in range(8): a(f"v_max3_f32 v{4+q}, v{4+q}, v{SB+16*q+2*i}, v{SB+16*q+2*i+1}")
    a(f"""
    s_sub_u32 s40, s40, 1
    s_cmp_lg_u32 s40, 0
    s_cbranch_scc1 K2_MAXLOOP
    v_mov_b32 v6, v4
    v_mov_b32 v7, v5
    s_nop 1
    v_permlane32_swap_b32 v4, v6
    v_permlane32_swap_b32 v5, v7
    s_nop 1
    v_max_f32 v4, v4, v6
    v_max_f32 v5, v5, v7
    """)
    for q in range(2):
        for r in range(16): a(f"v_sub_f32 v{CF+16*q+r}, 0, v{4+q}")
    att_init(a)
    att_start(a, True)
    att_loop(a, "K2S", True)
    a("s_branch K2_FIN")
    return lab, 176

def k3(a):
    lab = "oproj_kernel"
    head(a, lab)
    a("""
    s_cmp_ge_u32 s2, 256
    s_cbranch_scc1 K3_END
    s_load_dwordx2 s[4:5], s[0:1], 16
    s_load_dwordx2 s[6:7], s[0:1], 40
    s_load_dwordx2 s[8:9], s[0:1], 56
    s_load_dwordx2 s[12:13], s[0:1], 72
    v_lshrrev_b32 v1, 6, v0
    v_and_b32 v0, 63, v0
    v_readfirstlane_b32 s16, v1
    s_and_b32 s17, s2, 7
    s_lshr_b32 s18, s2, 3
    s_and_b32 s19, s18, 7
    s_lshr_b32 s18, s18, 3
    s_lshl_b32 s17, s17, 2
    s_add_u32 s17, s17, s18
    s_lshr_b32 s32, s16, 1
    s_and_b32 s33, s16, 1
    s_lshl_b32 s17, s17, 1
    s_add_u32 s17, s17, s33
    v_lshrrev_b32 v1, 3, v0
    v_and_b32 v2, 7, v0
    v_bfe_u32 v3, v0, 4, 1
    v_lshlrev_b32 v3, 1, v3
    v_xor_b32 v3, v3, v2
    v_lshlrev_b32 v3, 4, v3
    v_lshl_add_u32 v5, v1, 10, v3
    v_lshlrev_b32 v4, 4, v0
    s_cmp_eq_u32 s32, 1
    s_waitcnt lgkmcnt(0)
    s_cselect_b32 s4, s6, s4
    s_cselect_b32 s5, s7, s5
    """)
    srd(a, 20, 4, 512 * 1024)
    srd(a, 24, 8, 2048 * 1024)
    srd(a, 28, 12, WS_BYTES)
    a(f"""
    s_lshl_b32 s34, s33, 13
    s_lshl_b32 s35, s19, 7
    s_add_u32 s34, s34, s35
    s_lshl_b32 s35, s32, 16
    s_lshl_b32 s36, s33, 10
    s_add_u32 s35, s35, s36
    s_lshl_b32 s36, s17, 16
    s_lshl_b32 s37, s32, 15
    s_add_u32 s36, s36, s37
    s_add_u32 s36, s36, {hex(O_OFF)}
    """)
    OF, ACC, WF = 64, 32, 192
    def stage(st):
        for i in range(8):
            p = 16 * st + 2 * i
            a(f"s_add_u32 m0, s35, {p*1024}\ns_add_u32 s37, s34, {p*8192}\nbuffer_load_dwordx4 v5, s[20:23], s37 offen lds")
            s = 8 * st + i
            if i % 4 == 0: a(f"s_add_u32 s38, s36, {s*1024}")
            a(f"buffer_load_dwordx4 {vr(OF+4*s,4)}, v4, s[28:31], s38 offen offset:{(i%4)*1024}")
    for st in range(3): stage(st)
    a("""
    v_lshrrev_b32 v1, 5, v0
    v_bfe_u32 v2, v0, 2, 2
    v_lshl_add_u32 v6, v1, 2, v2
    v_lshlrev_b32 v6, 7, v6
    v_and_b32 v3, 1, v0
    v_lshl_add_u32 v6, v3, 6, v6
    v_bfe_u32 v3, v0, 4, 1
    v_lshl_add_u32 v6, v3, 4, v6
    v_bfe_u32 v3, v0, 1, 1
    v_lshl_add_u32 v6, v3, 3, v6
    s_lshl_b32 s37, s32, 16
    v_add_u32 v6, s37, v6
    v_lshrrev_b32 v2, 1, v2
    v_lshl_add_u32 v8, v2, 5, v6
    v_xor_b32 v9, 32, v8
    v_and_b32 v2, 31, v0
    v_lshlrev_b32 v10, 10, v2
    v_lshl_add_u32 v10, v1, 6, v10
    """)
    def reads(s):
        f = WF + 8 * (s & 1)
        return [f"ds_read_b64_tr_b16 {vr(f+4*c+2*e,2)}, v{8+c} offset:{s*2048+e*1024}" for c in range(2) for e in range(2)]
    a("s_waitcnt vmcnt(32)\ns_barrier")
    for r in reads(0): a(r)
    stage(3)
    for s in range(32):
        f = WF + 8 * (s & 1)
        M = [f"v_mfma_f32_32x32x16_bf16 {vr(ACC+16*c,16)}, {vr(f+4*c,4)}, {vr(OF+4*s,4)}, {vr(ACC+16*c,16) if s else 0}" for c in range(2)]
        a("s_waitcnt lgkmcnt(0)")
        if s % 8 == 7 and s < 31:
            a(M[0])
            a(f"s_waitcnt vmcnt({32 - 16 * (s // 8)})\ns_barrier")
            for r in reads(s + 1): a(r)
            a(M[1])
        else:
            R = reads(s + 1) if s < 31 else []
            for r in R: a(r)
            a(M[0]); a(M[1])
    a(f"""
    s_lshl_b32 s37, s16, 12
    s_add_u32 s37, s37, 0x20000
    v_add_u32 v6, s37, v4
    v_xor_b32 v7, 0x2000, v6
    s_cmp_eq_u32 s32, 0
    s_cbranch_scc1 K3_B0
    s_nop 6
    """)
    def xchg(keep):
        give = ACC + 16 * (1 - keep); kp = ACC + 16 * keep
        for i in range(4): a(f"ds_write_b128 v6, {vr(give+4*i,4)} offset:{i*1024}")
        a("s_waitcnt lgkmcnt(0)\ns_barrier")
        for i in range(4): a(f"ds_read_b128 {vr(OF+4*i,4)}, v7 offset:{i*1024}")
        for i in range(4):
            a(f"s_waitcnt lgkmcnt({3-i})")
            for r in range(4): a(f"v_add_f32 v{kp+4*i+r}, v{kp+4*i+r}, v{OF+4*i+r}")
            for r in range(2): a(f"v_cvt_pk_bf16_f32 v{WF+2*i+r}, v{kp+4*i+2*r}, v{kp+4*i+2*r+1}")
    xchg(1)
    a("s_branch K3_ST\nK3_B0:\ns_nop 10")
    xchg(0)
    a(f"""
    K3_ST:
    s_lshl_b32 s37, s17, 15
    s_lshl_b32 s38, s19, 7
    s_add_u32 s37, s37, s38
    s_lshl_b32 s38, s32, 5
    s_add_u32 s37, s37, s38
    buffer_store_dwordx4 {vr(WF,4)}, v10, s[24:27], s37 offen
    buffer_store_dwordx4 {vr(WF+4,4)}, v10, s[24:27], s37 offen offset:16
    K3_END:
    s_endpgm
    """)
    return lab, 208

def main(out):
    ref = open(f"cdna_kernels/{NAME}.s.ref").read().split("\n")
    hdr = [l for l in ref if l.startswith(";") and "@launch" not in l and "Override launch" not in l and "grid=ceil" not in l]
    a = Asm()
    ks = [(k1, 512, 163840), (k2, 512, 131072), (k3, 256, 147456)]
    descs = []
    launches = []
    for f, blk, lds in ks:
        lab, nv = f(a)
        descs.append(desc(lab, nv))
        launches.append(f"; @launch kernel={lab} grid=(256,1,1) block=({blk},1,1) lds={lds}")
    s = "\n".join(hdr + launches) + '\n.amdgcn_target "amdgcn-amd-amdhsa--gfx950"\n.text\n' + a.text()
    s += '.section .rodata,"a"\n' + "".join(descs)
    open(out, "w").write(s)

if __name__ == "__main__":
    main(sys.argv[1] if len(sys.argv) > 1 else f"cdna_kernels/{NAME}.s")
```

```python
import sys
NAME = "gated_mix__softmax_full_mha__softmax_full_mha__prompt"
KV_OFF, Q_OFF, O_OFF, G_OFF = 0, 8 << 20, 12 << 20, 16 << 20
WS_BYTES = G_OFF + 8192
QSCALE = 0x3EB8AA3B
LOG2E = 0x3FB8AA3B

class Asm:
    def __init__(self): self.L = []
    def __call__(self, s):
        for x in s.strip("\n").split("\n"):
            x = x.strip()
            if not x: continue
            self.L.append(x if x.endswith(":") or x.startswith(".") else "    " + x)
    def text(self): return "\n".join(self.L) + "\n"

def vr(a, n): return f"v[{a}:{a+n-1}]"

def srd(a, d, lo, nbytes):
    a(f"s_mov_b32 s{d}, s{lo}\ns_mov_b32 s{d+1}, s{lo+1}\ns_mov_b32 s{d+2}, {hex(nbytes)}\ns_mov_b32 s{d+3}, 0x00020000")

def head(a, label):
    a(f".globl {label}\n.p2align 8\n.type {label},@function\n{label}:")

STAMPS = "--stamps" in sys.argv
STAMP_OFF = 20 << 20
def stamp(a, slot, cyc=False):
    if STAMPS: a(f"{'s_memtime' if cyc else 's_memrealtime'} s[{64+2*slot}:{65+2*slot}]")
def stamp_flush(a, kidx, vt=240):
    if not STAMPS: return
    a("s_waitcnt vmcnt(0)")
    stamp(a, 7)
    a(f"""
    s_load_dwordx2 s[96:97], s[0:1], 64
    s_load_dwordx2 s[88:89], s[0:1], 72
    s_waitcnt lgkmcnt(0)
    s_sub_u32 s96, s96, {512*kidx}
    s_subb_u32 s97, s97, 0
    s_mov_b32 s98, 256
    s_mov_b32 s99, 0x00020000
    s_mov_b32 s90, {hex(STAMP_OFF + (1 << 20))}
    s_mov_b32 s91, 0x00020000
    s_mov_b64 exec, 1
    s_lshl_b32 s92, s2, 4
    s_add_u32 s92, s92, s16
    s_lshl_b32 s93, s92, 5
    s_add_u32 s93, s93, {hex(STAMP_OFF + kidx * 0x20000)}
    v_mov_b32 v{vt+8}, 0
    """)
    for i in range(8): a(f"v_mov_b32 v{vt+i}, s{64+2*i}")
    a(f"""
    buffer_store_dwordx4 v[{vt}:{vt+3}], v{vt+8}, s[88:91], s93 offen
    buffer_store_dwordx4 v[{vt+4}:{vt+7}], v{vt+8}, s[88:91], s93 offen offset:16
    s_cmp_lg_u32 s92, 0
    s_cbranch_scc1 STAMP_SKIP{len(a.L)}
    v_mov_b32 v{vt+3}, v{vt+7}
    buffer_store_dwordx4 v[{vt}:{vt+3}], v{vt+8}, s[96:99], 0 offen offset:{16*kidx}
    STAMP_SKIP{len(a.L)}:
    s_waitcnt vmcnt(0)
    """)

def desc(label, nv):
    acc = (nv + 3) // 4 * 4
    return f""".p2align 6
.amdhsa_kernel {label}
  .amdhsa_next_free_vgpr {nv}
  .amdhsa_next_free_sgpr 102
  .amdhsa_accum_offset {acc}
  .amdhsa_group_segment_fixed_size 0
  .amdhsa_kernarg_size 80
  .amdhsa_user_sgpr_count 2
  .amdhsa_user_sgpr_kernarg_segment_ptr 1
  .amdhsa_system_sgpr_workgroup_id_x 1
.end_amdhsa_kernel
"""

def k1(a):
    lab = "qkv_kernel"
    head(a, lab)
    a("""
    s_cmp_ge_u32 s2, 256
    s_cbranch_scc1 K1_END
    """)
    stamp(a, 0)
    a("""
    s_load_dwordx4 s[4:7], s[0:1], 0
    s_load_dwordx2 s[8:9], s[0:1], 32
    s_load_dwordx2 s[10:11], s[0:1], 48
    s_load_dwordx2 s[12:13], s[0:1], 72
    v_lshrrev_b32 v1, 6, v0
    v_and_b32 v0, 63, v0
    v_readfirstlane_b32 s16, v1
    s_and_b32 s17, s2, 7
    s_lshr_b32 s18, s2, 3
    s_and_b32 s19, s18, 1
    s_lshl_b32 s17, s17, 1
    s_add_u32 s17, s17, s19
    s_lshr_b32 s18, s18, 1
    s_and_b32 s19, s17, 7
    s_cmp_ge_u32 s17, 8
    s_waitcnt lgkmcnt(0)
    s_cselect_b32 s6, s8, s6
    s_cselect_b32 s7, s9, s7
    """)
    srd(a, 20, 4, 2048 * 1024)
    srd(a, 24, 6, 512 * 3072)
    srd(a, 28, 12, WS_BYTES)
    a("s_cmp_ge_u32 s16, 4\ns_cbranch_scc1 K1_LOADER")
    ACC = 32
    FR = [128, 148]
    a("""
    s_lshr_b32 s32, s16, 1
    s_and_b32 s33, s16, 1
    v_and_b32 v1, 31, v0
    v_lshrrev_b32 v2, 5, v0
    v_bfe_u32 v3, v0, 1, 3
    v_lshlrev_b32 v4, 7, v1
    s_lshl_b32 s34, s32, 13
    v_add_u32 v4, s34, v4
    """)
    for s in range(4):
        a(f"v_add_u32 v5, {2*s}, v2\nv_xor_b32 v5, v5, v3\nv_lshl_add_u32 v{8+s}, v5, 4, v4")
    a("""
    v_bfe_u32 v5, v0, 2, 2
    v_lshl_add_u32 v6, v2, 3, v5
    v_lshlrev_b32 v6, 7, v6
    v_lshrrev_b32 v5, 1, v5
    v_xor_b32 v5, s33, v5
    v_lshl_add_u32 v6, v5, 6, v6
    v_bfe_u32 v5, v0, 4, 1
    v_lshl_add_u32 v6, v5, 5, v6
    v_and_b32 v5, 3, v0
    v_lshl_add_u32 v6, v5, 3, v6
    v_add_u32 v12, 0x10000, v6
    v_add_u32 v13, 0x1c000, v6
    """)
    a(f"""
    s_lshl_b32 s35, s17, 2
    s_lshl_b32 s36, s33, 1
    s_add_u32 s35, s35, s36
    s_lshl_b32 s36, s18, 2
    s_lshl_b32 s37, s32, 1
    s_add_u32 s36, s36, s37
    s_lshl_b32 s38, s35, 16
    s_lshl_b32 s39, s36, 10
    s_add_u32 s38, s38, s39
    s_add_u32 s38, s38, {hex(Q_OFF)}
    s_lshl_b32 s40, s35, 17
    s_lshl_b32 s39, s36, 11
    s_add_u32 s40, s40, s39
    v_lshlrev_b32 v14, 4, v0
    v_and_b32 v5, 0x33, v0
    v_bfe_u32 v6, v0, 2, 1
    v_lshl_or_b32 v5, v6, 3, v5
    v_bfe_u32 v6, v0, 3, 1
    v_lshl_or_b32 v5, v6, 2, v5
    v_lshlrev_b32 v15, 4, v5
    v_and_b32 v5, 15, v0
    v_lshlrev_b32 v5, 4, v5
    v_lshl_add_u32 v5, v2, 8, v5
    v_bfe_u32 v6, v0, 4, 1
    v_lshl_add_u32 v16, v6, 17, v5
    """)
    def reads(c, s, buf):
        f = FR[buf]; slot = c % 4
        xo = slot * 16384
        wreg = 12 + (slot >> 1); wo = (slot & 1) * 24576 + s * 2048
        R = [f"ds_read_b128 {vr(f,4)}, v{8+s} offset:{xo}"]
        R += [f"ds_read_b64_tr_b16 {vr(f+8+2*e,2)}, v{wreg} offset:{wo+e*512}" for e in range(2)]
        R += [f"ds_read_b128 {vr(f+4,4)}, v{8+s} offset:{xo+4096}"]
        R += [f"ds_read_b64_tr_b16 {vr(f+12+2*e,2)}, v{wreg} offset:{wo+8192+e*512}" for e in range(2)]
        R += [f"ds_read_b64_tr_b16 {vr(f+16+2*e,2)}, v{wreg} offset:{wo+16384+e*512}" for e in range(2)]
        return R
    a("s_barrier")
    stamp(a, 1)
    for r in reads(0, 0, 0): a(r)
    for n in range(32):
        c, s = divmod(n, 4)
        f = FR[n & 1]
        M = []
        for part in range(3):
            for b in range(2):
                d = ACC + 16 * (2 * part + b)
                x = vr(f + 4 * b, 4); w = vr(f + 8 + 4 * part, 4)
                A, B = (w, x) if part < 2 else (x, w)
                M.append(f"v_mfma_f32_32x32x16_bf16 {vr(d,16)}, {A}, {B}, {vr(d,16) if n else 0}")
        R = reads(*divmod(n + 1, 4), (n + 1) & 1) if n < 31 else []
        a("s_waitcnt lgkmcnt(0)")
        a(M[0])
        if s == 3 and n < 31: a("s_barrier")
        grp = [R[0:3], R[3:6], R[6:8], [], []]
        for i in range(5):
            for r in grp[i]: a(r)
            a(M[i + 1])
    stamp(a, 2)
    a(f"s_mov_b32 s41, {hex(QSCALE)}\ns_nop 6")
    T = 128
    for b in range(2):
        d = ACC + 16 * b
        for r in range(16): a(f"v_mul_f32 v{d+r}, s41, v{d+r}")
        for hd in range(2):
            t = T + 8 * b + 4 * hd
            for i in range(4): a(f"v_cvt_pk_bf16_f32 v{t+i}, v{d+8*hd+2*i}, v{d+8*hd+2*i+1}")
            a(f"s_add_u32 s42, s38, {hd*65536 + b*1024}")
            a(f"buffer_store_dwordx4 {vr(t,4)}, v14, s[28:31], s42 offen")
    for b in range(2):
        d = ACC + 32 + 16 * b
        for hd in range(2):
            t = T + 16 + 8 * b + 4 * hd
            for i in range(4): a(f"v_cvt_pk_bf16_f32 v{t+i}, v{d+8*hd+2*i}, v{d+8*hd+2*i+1}")
            a(f"s_add_u32 s42, s40, {hd*131072 + b*2048}")
            a(f"buffer_store_dwordx4 {vr(t,4)}, v15, s[28:31], s42 offen")
    for b in range(2):
        d = ACC + 64 + 16 * b
        for m in range(2):
            t = ACC + 8 * b + 4 * m
            for i in range(4): a(f"v_cvt_pk_bf16_f32 v{t+i}, v{d+8*m+2*i}, v{d+8*m+2*i+1}")
            a(f"s_add_u32 s42, s40, {b*2048 + 1024 + m*512}")
            a(f"buffer_store_dwordx4 {vr(t,4)}, v16, s[28:31], s42 offen")
    stamp(a, 3)
    stamp_flush(a, 0)
    a("s_endpgm")
    a("""
    K1_LOADER:
    s_sub_u32 s32, s16, 4
    v_lshrrev_b32 v1, 3, v0
    v_and_b32 v2, 7, v0
    v_lshrrev_b32 v3, 4, v0
    s_and_b32 s33, s32, 1
    s_lshl_b32 s33, s33, 2
    v_add_u32 v4, s33, v3
    v_xor_b32 v4, v4, v2
    v_lshlrev_b32 v4, 4, v4
    v_lshl_add_u32 v4, v1, 10, v4
    v_and_b32 v3, 1, v3
    v_lshlrev_b32 v3, 2, v3
    v_xor_b32 v3, v3, v2
    v_lshlrev_b32 v3, 4, v3
    v_mul_u32_u24 v5, 3072, v1
    v_add_u32 v5, v5, v3
    s_lshl_b32 s34, s18, 17
    s_lshl_b32 s35, s32, 13
    s_add_u32 s34, s34, s35
    s_mul_i32 s35, s32, 24576
    s_lshl_b32 s36, s19, 7
    s_add_u32 s35, s35, s36
    s_lshl_b32 s36, s32, 10
    """)
    def chunk(c):
        slot = c % 4
        for i in range(6):
            a(f"s_add_u32 m0, s36, {65536 + slot*24576 + i*4096}")
            a(f"s_add_u32 s37, s35, {(i&1)*32*3072 + (i>>1)*1024 + c*64*3072}")
            a("buffer_load_dwordx4 v5, s[24:27], s37 offen lds")
            if i < 4:
                a(f"s_add_u32 m0, s36, {slot*16384 + i*4096}")
                a(f"s_add_u32 s37, s34, {i*32768 + c*128}")
                a("buffer_load_dwordx4 v4, s[20:23], s37 offen lds")
    for c in range(4): chunk(c)
    a("s_waitcnt vmcnt(30)\ns_barrier\ns_waitcnt vmcnt(20)\ns_barrier")
    for c in range(4, 8):
        chunk(c)
        if c < 7: a("s_waitcnt vmcnt(20)\ns_barrier")
    srd(a, 40, 10, 1024)
    a("""
    v_lshlrev_b32 v1, 4, v0
    s_lshl_b32 s37, s2, 3
    s_lshl_b32 s38, s32, 1
    s_add_u32 s37, s37, s38
    s_lshl_b32 s38, s37, 10
    buffer_load_dwordx4 v[8:11], v1, s[40:43], 0 offen
    buffer_load_dwordx4 v[12:15], v1, s[20:23], s38 offen
    buffer_load_dwordx4 v[16:19], v1, s[20:23], s38 offen offset:1024
    s_waitcnt vmcnt(23)
    s_barrier
    s_waitcnt vmcnt(13)
    s_barrier
    s_waitcnt vmcnt(3)
    s_barrier
    s_waitcnt vmcnt(0)
    """)
    for i in range(4):
        a(f"v_lshlrev_b32 v{20+2*i}, 16, v{8+i}\nv_and_b32 v{21+2*i}, 0xffff0000, v{8+i}")
    for r in range(2):
        for i in range(4):
            a(f"v_lshlrev_b32 v28, 16, v{12+4*r+i}\nv_and_b32 v29, 0xffff0000, v{12+4*r+i}")
            a(f"v_mul_f32 v{30+r}, v28, v{20+2*i}" if i == 0 else f"v_fmac_f32 v{30+r}, v28, v{20+2*i}")
            a(f"v_fmac_f32 v{30+r}, v29, v{21+2*i}")
    for d in ("quad_perm:[1,0,3,2] row_mask:0xf", "quad_perm:[2,3,0,1] row_mask:0xf", "row_half_mirror row_mask:0xf",
              "row_mirror row_mask:0xf", "row_bcast:15 row_mask:0xa", "row_bcast:31 row_mask:0xc"):
        a("s_nop 1")
        a(f"v_add_f32_dpp v30, v30, v30 {d} bank_mask:0xf\nv_add_f32_dpp v31, v31, v31 {d} bank_mask:0xf")
    a(f"""
    v_mul_f32 v30, {hex(LOG2E | 0x80000000)}, v30
    v_mul_f32 v31, {hex(LOG2E | 0x80000000)}, v31
    v_exp_f32 v30, v30
    v_exp_f32 v31, v31
    s_nop 0
    v_add_f32 v30, 1.0, v30
    v_add_f32 v31, 1.0, v31
    v_rcp_f32 v30, v30
    v_rcp_f32 v31, v31
    s_lshl_b32 s38, s37, 2
    s_add_u32 s38, s38, {hex(G_OFF)}
    v_mov_b32 v1, 0
    v_cmp_eq_u32 vcc, 63, v0
    s_and_saveexec_b64 s[44:45], vcc
    buffer_store_dwordx2 v[30:31], v1, s[28:31], s38 offen
    K1_END:
    s_endpgm
    """)
    return lab, 168

SB, OA, QF, KF, VF, CF = 16, 80, 112, 120, 128, 144
POS = (2, 7, 11)
def att_init(a):
    for r in range(VF, VF + 16): a(f"v_mov_b32 v{r}, v13")
    for r in range(OA, OA + 32): a(f"v_mov_b32 v{r}, 0")
    for r in range(SB + 56, SB + 64): a(f"v_mov_b32 v{r}, 0")
    a("v_lshlrev_b32 v9, 4, v0\nv_mov_b32 v10, v14")
def att_start(a, creg):
    a(f"""
    ds_read_b128 {vr(KF,4)}, v9
    ds_read_b128 {vr(KF+4,4)}, v9 offset:2048
    s_mov_b64 exec, s[32:33]
    ds_read_b128 {vr(VF,4)}, v10 offset:1024
    ds_read_b128 {vr(VF+4,4)}, v10 offset:1536
    s_mov_b64 exec, -1
    s_waitcnt lgkmcnt(3)
    """)
    for q in range(2):
        c = vr(CF + 16 * q, 16) if creg else "0"
        a(f"v_mfma_f32_32x32x16_bf16 {vr(SB+16*q,16)}, {vr(KF,4)}, {vr(QF+4*q,4)}, {c}")
    a("s_nop 11")
def att_loop(a, tag, creg, nt=8):
    a(f"s_mov_b32 s40, {64 // nt}\n.p2align 6\n{tag}_LOOP:")
    for j in range(nt):
        kb_n = KF + 4 * ((j + 1) & 1); kb_nn = KF + 4 * (j & 1)
        vb = VF + 8 * (j & 1); vbn = VF + 8 * ((j + 1) & 1)
        for q in range(2):
            n = 2 * j + q
            cur = SB + 16 * (n % 4); prev = SB + 16 * ((n - 1) % 4); nxt = SB + 16 * ((n + 2) % 4)
            oprev = OA + 16 * (1 - q); ocur = OA + 16 * q
            vprev = (vbn if q == 0 else vb) + 4
            c = vr(CF + 16 * q, 16) if creg else "0"
            for e in range(16):
                if e == POS[0]:
                    a(f"v_smfmac_f32_32x32x32_bf16 {vr(oprev,16)}, {vr(vprev,4)}, {vr(prev+8,8)}, v8")
                    if q == 0:
                        a("s_mov_b64 exec, s[32:33]")
                        a(f"ds_read_b128 {vr(vbn,4)}, v10 offset:{(j+1)*2048+1024}")
                        a(f"ds_read_b128 {vr(vbn+4,4)}, v10 offset:{(j+1)*2048+1536}")
                        a("s_mov_b64 exec, -1")
                if e == POS[1]:
                    if q == 0: a("s_waitcnt lgkmcnt(2)")
                    a(f"v_mfma_f32_32x32x16_bf16 {vr(nxt,16)}, {vr(kb_n,4)}, {vr(QF+4*q,4)}, {c}")
                    if q == 1: a(f"ds_read_b128 {vr(kb_nn,4)}, v9 offset:{(j+2)*2048}")
                if e == POS[2]:
                    a(f"v_smfmac_f32_32x32x32_bf16 {vr(ocur,16)}, {vr(vb,4)}, {vr(cur,8)}, v8")
                a(f"v_exp_f32 v{cur+e}, v{cur+e}")
        if j == nt - 2 and not creg:
            a(f"s_cmp_lg_u32 s40, {64 // nt}\ns_cbranch_scc1 {tag}_NOBAR\ns_waitcnt vmcnt(0)\ns_barrier\n{tag}_NOBAR:")
    a(f"""
    v_add_u32 v9, {nt*2048}, v9
    v_add_u32 v10, {nt*2048}, v10
    s_sub_u32 s40, s40, 1
    s_cmp_lg_u32 s40, 0
    s_cbranch_scc1 {tag}_LOOP
    v_smfmac_f32_32x32x32_bf16 {vr(OA+16,16)}, {vr(VF+12,4)}, {vr(SB+56,8)}, v8
    s_waitcnt lgkmcnt(0)
    s_nop 11
    """)

def k2(a):
    lab = "attn_kernel"
    head(a, lab)
    a("""
    s_cmp_ge_u32 s2, 256
    s_cbranch_scc1 K2_END
    """)
    stamp(a, 0)
    a("""
    s_load_dwordx2 s[12:13], s[0:1], 72
    v_lshrrev_b32 v1, 6, v0
    v_and_b32 v0, 63, v0
    v_readfirstlane_b32 s16, v1
    s_and_b32 s17, s2, 7
    s_lshr_b32 s18, s2, 3
    s_lshl_b32 s17, s17, 3
    s_and_b32 s19, s18, 7
    s_add_u32 s17, s17, s19
    s_lshr_b32 s18, s18, 3
    s_lshl_b32 s18, s18, 4
    s_lshl_b32 s19, s16, 1
    s_add_u32 s18, s18, s19
    v_lshlrev_b32 v9, 4, v0
    v_and_b32 v1, 31, v0
    v_lshlrev_b32 v2, 2, v1
    s_waitcnt lgkmcnt(0)
    """)
    srd(a, 28, 12, WS_BYTES)
    a(f"""
    s_lshl_b32 s34, s17, 16
    s_lshl_b32 s35, s18, 10
    s_add_u32 s34, s34, s35
    s_add_u32 s34, s34, {hex(Q_OFF)}
    s_lshl_b32 s35, s18, 7
    s_add_u32 s35, s35, {hex(G_OFF)}
    s_lshl_b32 s36, s17, 17
    s_lshl_b32 s37, s16, 10
    s_add_u32 s36, s36, s37
    s_mov_b32 m0, s37
    buffer_load_dwordx4 {vr(QF,4)}, v9, s[28:31], s34 offen
    buffer_load_dwordx4 {vr(QF+4,4)}, v9, s[28:31], s34 offen offset:1024
    buffer_load_dwordx4 v9, s[28:31], s36 offen lds
    """)
    for i in range(1, 16):
        a(f"s_add_u32 m0, s37, {i*8192}\ns_add_u32 s38, s36, {i*8192}\nbuffer_load_dwordx4 v9, s[28:31], s38 offen lds")
    a(f"""
    buffer_load_dword v11, v2, s[28:31], s35 offen
    buffer_load_dword v12, v2, s[28:31], s35 offen offset:128
    v_mov_b32 v8, 0xdddddddd
    s_mov_b32 s32, 0x0000ffff
    s_mov_b32 s33, 0x0000ffff
    v_and_b32 v3, 27, v1
    v_mov_b32 v4, 0x3f803f80
    v_cmp_eq_u32 vcc, 16, v3
    v_and_b32 v14, 15, v0
    v_lshlrev_b32 v14, 4, v14
    v_cndmask_b32 v13, 0, v4, vcc
    v_lshrrev_b32 v3, 5, v0
    v_lshl_add_u32 v14, v3, 8, v14
    """)
    att_init(a)
    a("s_waitcnt vmcnt(15)\ns_barrier")
    stamp(a, 1); stamp(a, 4, True)
    att_start(a, False)
    att_loop(a, "K2F", False)
    stamp(a, 2); stamp(a, 5, True)
    a(f"""
    s_mov_b32 s42, 0x17800000
    s_mov_b32 s43, 0x67800000
    v_mov_b32 v3, 0x207
    v_cmp_lt_f32 vcc, s42, v{OA+8}
    v_cmp_lt_f32 s[44:45], s42, v{OA+24}
    v_cmp_gt_f32 s[46:47], s43, v{OA+8}
    v_cmp_gt_f32 s[48:49], s43, v{OA+24}
    s_and_b64 s[44:45], s[44:45], vcc
    s_and_b64 s[46:47], s[46:47], s[48:49]
    s_and_b64 s[44:45], s[44:45], s[46:47]
    """)
    for q in range(2):
        for r in range(8):
            a(f"v_cmp_class_f32 vcc, v{OA+16*q+r}, v3\ns_nop 0\ns_andn2_b64 s[44:45], s[44:45], vcc")
    a("s_cmp_eq_u64 s[44:45], -1\ns_cbranch_scc0 K2_SLOW\nK2_FIN:")
    a(f"""
    s_lshr_b32 s41, s17, 5
    s_cmp_eq_u32 s41, 0
    s_cselect_b32 s42, 1.0, -1.0
    s_cselect_b32 s43, 0, 1.0
    v_mov_b32 v3, s43
    v_rcp_f32 v4, v{OA+8}
    v_rcp_f32 v5, v{OA+24}
    v_fma_f32 v11, v11, s42, v3
    v_fma_f32 v12, v12, s42, v3
    v_mul_f32 v4, v4, v11
    v_mul_f32 v5, v5, v12
    s_lshl_b32 s34, s18, 16
    s_lshl_b32 s35, s17, 10
    s_add_u32 s34, s34, s35
    s_add_u32 s34, s34, {hex(O_OFF)}
    s_add_u32 s35, s34, 0x10000
    v_lshlrev_b32 v9, 4, v0
    """)
    for q in range(2):
        for r in range(8): a(f"v_mul_f32 v{OA+16*q+r}, v{OA+16*q+r}, v{4+q}")
        for i in range(4): a(f"v_cvt_pk_bf16_f32 v{SB+4*q+i}, v{OA+16*q+2*i}, v{OA+16*q+2*i+1}")
        a(f"buffer_store_dwordx4 {vr(SB+4*q,4)}, v9, s[28:31], s{34+q} offen")
    stamp_flush(a, 1)
    a("K2_END:\ns_endpgm")
    a(f"""
    K2_SLOW:
    v_lshlrev_b32 v9, 4, v0
    v_mov_b32 v4, 0xff800000
    v_mov_b32 v5, 0xff800000
    s_mov_b32 s40, 64
    K2_MAXLOOP:
    ds_read_b128 {vr(KF,4)}, v9
    v_add_u32 v9, 2048, v9
    s_waitcnt lgkmcnt(0)
    v_mfma_f32_32x32x16_bf16 {vr(SB,16)}, {vr(KF,4)}, {vr(QF,4)}, 0
    v_mfma_f32_32x32x16_bf16 {vr(SB+16,16)}, {vr(KF,4)}, {vr(QF+4,4)}, 0
    s_nop 11
    """)
    for q in range(2):
        for i in range(8): a(f"v_max3_f32 v{4+q}, v{4+q}, v{SB+16*q+2*i}, v{SB+16*q+2*i+1}")
    a(f"""
    s_sub_u32 s40, s40, 1
    s_cmp_lg_u32 s40, 0
    s_cbranch_scc1 K2_MAXLOOP
    v_mov_b32 v6, v4
    v_mov_b32 v7, v5
    s_nop 1
    v_permlane32_swap_b32 v4, v6
    v_permlane32_swap_b32 v5, v7
    s_nop 1
    v_max_f32 v4, v4, v6
    v_max_f32 v5, v5, v7
    """)
    for q in range(2):
        for r in range(16): a(f"v_sub_f32 v{CF+16*q+r}, 0, v{4+q}")
    att_init(a)
    att_start(a, True)
    att_loop(a, "K2S", True)
    a("s_branch K2_FIN")
    return lab, 176

def k3(a):
    lab = "oproj_kernel"
    head(a, lab)
    a("""
    s_cmp_ge_u32 s2, 256
    s_cbranch_scc1 K3_END
    """)
    stamp(a, 0)
    a("""
    s_load_dwordx2 s[4:5], s[0:1], 16
    s_load_dwordx2 s[6:7], s[0:1], 40
    s_load_dwordx2 s[8:9], s[0:1], 56
    s_load_dwordx2 s[12:13], s[0:1], 72
    v_lshrrev_b32 v1, 6, v0
    v_and_b32 v0, 63, v0
    v_readfirstlane_b32 s16, v1
    s_and_b32 s17, s2, 7
    s_lshr_b32 s18, s2, 3
    s_and_b32 s19, s18, 7
    s_lshr_b32 s18, s18, 3
    s_lshl_b32 s17, s17, 2
    s_add_u32 s17, s17, s18
    s_lshr_b32 s32, s16, 1
    s_and_b32 s33, s16, 1
    s_lshl_b32 s17, s17, 1
    s_add_u32 s17, s17, s33
    v_lshrrev_b32 v1, 3, v0
    v_and_b32 v2, 7, v0
    v_bfe_u32 v3, v0, 4, 1
    v_lshlrev_b32 v3, 1, v3
    v_xor_b32 v3, v3, v2
    v_lshlrev_b32 v3, 4, v3
    v_lshl_add_u32 v5, v1, 10, v3
    v_lshlrev_b32 v4, 4, v0
    s_cmp_eq_u32 s32, 1
    s_waitcnt lgkmcnt(0)
    s_cselect_b32 s4, s6, s4
    s_cselect_b32 s5, s7, s5
    """)
    srd(a, 20, 4, 512 * 1024)
    srd(a, 24, 8, 2048 * 1024)
    srd(a, 28, 12, WS_BYTES)
    a(f"""
    s_lshl_b32 s34, s33, 13
    s_lshl_b32 s35, s19, 7
    s_add_u32 s34, s34, s35
    s_lshl_b32 s35, s32, 16
    s_lshl_b32 s36, s33, 10
    s_add_u32 s35, s35, s36
    s_lshl_b32 s36, s17, 16
    s_lshl_b32 s37, s32, 15
    s_add_u32 s36, s36, s37
    s_add_u32 s36, s36, {hex(O_OFF)}
    """)
    OF, ACC, WF = 64, 32, 192
    def stage(st):
        for i in range(8):
            p = 16 * st + 2 * i
            a(f"s_add_u32 m0, s35, {p*1024}\ns_add_u32 s37, s34, {p*8192}\nbuffer_load_dwordx4 v5, s[20:23], s37 offen lds")
            s = 8 * st + i
            if i % 4 == 0: a(f"s_add_u32 s38, s36, {s*1024}")
            a(f"buffer_load_dwordx4 {vr(OF+4*s,4)}, v4, s[28:31], s38 offen offset:{(i%4)*1024}")
    for st in range(3): stage(st)
    a("""
    v_lshrrev_b32 v1, 5, v0
    v_bfe_u32 v2, v0, 2, 2
    v_lshl_add_u32 v6, v1, 2, v2
    v_lshlrev_b32 v6, 7, v6
    v_and_b32 v3, 1, v0
    v_lshl_add_u32 v6, v3, 6, v6
    v_bfe_u32 v3, v0, 4, 1
    v_lshl_add_u32 v6, v3, 4, v6
    v_bfe_u32 v3, v0, 1, 1
    v_lshl_add_u32 v6, v3, 3, v6
    s_lshl_b32 s37, s32, 16
    v_add_u32 v6, s37, v6
    v_lshrrev_b32 v2, 1, v2
    v_lshl_add_u32 v8, v2, 5, v6
    v_xor_b32 v9, 32, v8
    v_and_b32 v2, 31, v0
    v_lshlrev_b32 v10, 10, v2
    v_lshl_add_u32 v10, v1, 6, v10
    """)
    def reads(s):
        f = WF + 8 * (s & 1)
        return [f"ds_read_b64_tr_b16 {vr(f+4*c+2*e,2)}, v{8+c} offset:{s*2048+e*1024}" for c in range(2) for e in range(2)]
    a("s_waitcnt vmcnt(32)\ns_barrier")
    stamp(a, 1)
    for r in reads(0): a(r)
    stage(3)
    for s in range(32):
        f = WF + 8 * (s & 1)
        M = [f"v_mfma_f32_32x32x16_bf16 {vr(ACC+16*c,16)}, {vr(f+4*c,4)}, {vr(OF+4*s,4)}, {vr(ACC+16*c,16) if s else 0}" for c in range(2)]
        a("s_waitcnt lgkmcnt(0)")
        if s % 8 == 7 and s < 31:
            a(M[0])
            a(f"s_waitcnt vmcnt({32 - 16 * (s // 8)})\ns_barrier")
            for r in reads(s + 1): a(r)
            a(M[1])
        else:
            R = reads(s + 1) if s < 31 else []
            for r in R: a(r)
            a(M[0]); a(M[1])
    stamp(a, 2)
    a(f"""
    s_lshl_b32 s37, s16, 12
    s_add_u32 s37, s37, 0x20000
    v_add_u32 v6, s37, v4
    v_xor_b32 v7, 0x2000, v6
    s_cmp_eq_u32 s32, 0
    s_cbranch_scc1 K3_B0
    s_nop 6
    """)
    def xchg(keep):
        give = ACC + 16 * (1 - keep); kp = ACC + 16 * keep
        for i in range(4): a(f"ds_write_b128 v6, {vr(give+4*i,4)} offset:{i*1024}")
        a("s_waitcnt lgkmcnt(0)\ns_barrier")
        for i in range(4): a(f"ds_read_b128 {vr(OF+4*i,4)}, v7 offset:{i*1024}")
        for i in range(4):
            a(f"s_waitcnt lgkmcnt({3-i})")
            for r in range(4): a(f"v_add_f32 v{kp+4*i+r}, v{kp+4*i+r}, v{OF+4*i+r}")
            for r in range(2): a(f"v_cvt_pk_bf16_f32 v{WF+2*i+r}, v{kp+4*i+2*r}, v{kp+4*i+2*r+1}")
    xchg(1)
    a("s_branch K3_ST\nK3_B0:\ns_nop 10")
    xchg(0)
    a(f"""
    K3_ST:
    s_lshl_b32 s37, s17, 15
    s_lshl_b32 s38, s19, 7
    s_add_u32 s37, s37, s38
    s_lshl_b32 s38, s32, 5
    s_add_u32 s37, s37, s38
    buffer_store_dwordx4 {vr(WF,4)}, v10, s[24:27], s37 offen
    buffer_store_dwordx4 {vr(WF+4,4)}, v10, s[24:27], s37 offen offset:16
    """)
    stamp_flush(a, 2)
    a("""
    K3_END:
    s_endpgm
    """)
    return lab, 208

def main(out):
    ref = open(f"cdna_kernels/{NAME}.s.ref").read().split("\n")
    hdr = [l for l in ref if l.startswith(";") and "@launch" not in l and "Override launch" not in l and "grid=ceil" not in l]
    a = Asm()
    ks = [(k1, 512, 163840), (k2, 512, 131072), (k3, 256, 147456)]
    descs = []
    launches = []
    for f, blk, lds in ks:
        lab, nv = f(a)
        if STAMPS: nv = 256
        descs.append(desc(lab, nv))
        launches.append(f"; @launch kernel={lab} grid=(256,1,1) block=({blk},1,1) lds={lds}")
    s = "\n".join(hdr + launches) + '\n.amdgcn_target "amdgcn-amd-amdhsa--gfx950"\n.text\n' + a.text()
    s += '.section .rodata,"a"\n' + "".join(descs)
    open(out, "w").write(s)

if __name__ == "__main__":
    args = [x for x in sys.argv[1:] if not x.startswith("--")]
    main(args[0] if args else f"cdna_kernels/{NAME}.s")
```

```python
import sys
NAME = "gated_mix__softmax_full_mha__softmax_full_mha__prompt"
KV_OFF, Q_OFF, O_OFF, G_OFF = 0, 8 << 20, 12 << 20, 16 << 20
WS_BYTES = G_OFF + 8192
QSCALE = 0x3EB8AA3B
LOG2E = 0x3FB8AA3B

class Asm:
    def __init__(self): self.L = []
    def __call__(self, s):
        for x in s.strip("\n").split("\n"):
            x = x.strip()
            if not x: continue
            self.L.append(x if x.endswith(":") or x.startswith(".") else "    " + x)
    def text(self): return "\n".join(self.L) + "\n"

def vr(a, n): return f"v[{a}:{a+n-1}]"

def srd(a, d, lo, nbytes):
    a(f"s_mov_b32 s{d}, s{lo}\ns_mov_b32 s{d+1}, s{lo+1}\ns_mov_b32 s{d+2}, {hex(nbytes)}\ns_mov_b32 s{d+3}, 0x00020000")

def head(a, label):
    a(f".globl {label}\n.p2align 8\n.type {label},@function\n{label}:")

STAMPS = "--stamps" in sys.argv
STAMP_OFF = 20 << 20
FINE = "--fine" in sys.argv
def stamp(a, slot, cyc=False):
    if STAMPS: a(f"{'s_memtime' if cyc else 's_memrealtime'} s[{64+2*slot}:{65+2*slot}]")
def stamp_flush(a, kidx, vt=240):
    if not STAMPS: return
    a("s_waitcnt vmcnt(0)")
    stamp(a, 7)
    a(f"""
    s_load_dwordx2 s[96:97], s[0:1], 64
    s_load_dwordx2 s[88:89], s[0:1], 72
    s_waitcnt lgkmcnt(0)
    s_mov_b32 s98, 256
    s_mov_b32 s99, 0x00020000
    s_mov_b32 s90, {hex(STAMP_OFF + (1 << 20))}
    s_mov_b32 s91, 0x00020000
    s_mov_b64 exec, 1
    s_lshl_b32 s92, s2, 4
    s_add_u32 s92, s92, s16
    s_lshl_b32 s93, s92, 5
    s_add_u32 s93, s93, {hex(STAMP_OFF + kidx * 0x20000)}
    v_mov_b32 v{vt+8}, 0
    """)
    for i in range(8): a(f"v_mov_b32 v{vt+i}, s{64+2*i}")
    a(f"""
    buffer_store_dwordx4 v[{vt}:{vt+3}], v{vt+8}, s[88:91], s93 offen
    buffer_store_dwordx4 v[{vt+4}:{vt+7}], v{vt+8}, s[88:91], s93 offen offset:16
    s_cmp_lg_u32 s92, 0
    s_cbranch_scc1 STAMP_SKIP{len(a.L)}
    v_mov_b32 v{vt+3}, v{vt+7}
    buffer_store_dwordx4 v[{vt}:{vt+3}], v{vt+8}, s[96:99], 0 offen offset:{16*kidx}
    STAMP_SKIP{len(a.L)}:
    s_waitcnt vmcnt(0)
    """)

def desc(label, nv):
    acc = (nv + 3) // 4 * 4
    return f""".p2align 6
.amdhsa_kernel {label}
  .amdhsa_next_free_vgpr {nv}
  .amdhsa_next_free_sgpr 102
  .amdhsa_accum_offset {acc}
  .amdhsa_group_segment_fixed_size 0
  .amdhsa_kernarg_size 80
  .amdhsa_user_sgpr_count 2
  .amdhsa_user_sgpr_kernarg_segment_ptr 1
  .amdhsa_system_sgpr_workgroup_id_x 1
.end_amdhsa_kernel
"""

def k1(a):
    lab = "qkv_kernel"
    head(a, lab)
    a("""
    s_cmp_ge_u32 s2, 256
    s_cbranch_scc1 K1_END
    """)
    stamp(a, 0)
    a("""
    s_load_dwordx4 s[4:7], s[0:1], 0
    s_load_dwordx2 s[8:9], s[0:1], 32
    s_load_dwordx2 s[10:11], s[0:1], 48
    s_load_dwordx2 s[12:13], s[0:1], 72
    v_lshrrev_b32 v1, 6, v0
    v_and_b32 v0, 63, v0
    v_readfirstlane_b32 s16, v1
    s_and_b32 s17, s2, 7
    s_lshr_b32 s18, s2, 3
    s_and_b32 s19, s18, 1
    s_lshl_b32 s17, s17, 1
    s_add_u32 s17, s17, s19
    s_lshr_b32 s18, s18, 1
    s_and_b32 s19, s17, 7
    s_cmp_ge_u32 s17, 8
    s_waitcnt lgkmcnt(0)
    s_cselect_b32 s6, s8, s6
    s_cselect_b32 s7, s9, s7
    """)
    if FINE: stamp(a, 6)
    srd(a, 20, 4, 2048 * 1024)
    srd(a, 24, 6, 512 * 3072)
    srd(a, 28, 12, WS_BYTES)
    a("s_cmp_ge_u32 s16, 4\ns_cbranch_scc1 K1_LOADER")
    ACC = 32
    FR = [128, 148]
    a("""
    s_lshr_b32 s32, s16, 1
    s_and_b32 s33, s16, 1
    v_and_b32 v1, 31, v0
    v_lshrrev_b32 v2, 5, v0
    v_bfe_u32 v3, v0, 1, 3
    v_lshlrev_b32 v4, 7, v1
    s_lshl_b32 s34, s32, 13
    v_add_u32 v4, s34, v4
    """)
    for s in range(4):
        a(f"v_add_u32 v5, {2*s}, v2\nv_xor_b32 v5, v5, v3\nv_lshl_add_u32 v{8+s}, v5, 4, v4")
    a("""
    v_bfe_u32 v5, v0, 2, 2
    v_lshl_add_u32 v6, v2, 3, v5
    v_lshlrev_b32 v6, 7, v6
    v_lshrrev_b32 v5, 1, v5
    v_xor_b32 v5, s33, v5
    v_lshl_add_u32 v6, v5, 6, v6
    v_bfe_u32 v5, v0, 4, 1
    v_lshl_add_u32 v6, v5, 5, v6
    v_and_b32 v5, 3, v0
    v_lshl_add_u32 v6, v5, 3, v6
    v_add_u32 v12, 0x10000, v6
    v_add_u32 v13, 0x1c000, v6
    """)
    a(f"""
    s_lshl_b32 s35, s17, 2
    s_lshl_b32 s36, s33, 1
    s_add_u32 s35, s35, s36
    s_lshl_b32 s36, s18, 2
    s_lshl_b32 s37, s32, 1
    s_add_u32 s36, s36, s37
    s_lshl_b32 s38, s35, 16
    s_lshl_b32 s39, s36, 10
    s_add_u32 s38, s38, s39
    s_add_u32 s38, s38, {hex(Q_OFF)}
    s_lshl_b32 s40, s35, 17
    s_lshl_b32 s39, s36, 11
    s_add_u32 s40, s40, s39
    v_lshlrev_b32 v14, 4, v0
    v_and_b32 v5, 0x33, v0
    v_bfe_u32 v6, v0, 2, 1
    v_lshl_or_b32 v5, v6, 3, v5
    v_bfe_u32 v6, v0, 3, 1
    v_lshl_or_b32 v5, v6, 2, v5
    v_lshlrev_b32 v15, 4, v5
    v_and_b32 v5, 15, v0
    v_lshlrev_b32 v5, 4, v5
    v_lshl_add_u32 v5, v2, 8, v5
    v_bfe_u32 v6, v0, 4, 1
    v_lshl_add_u32 v16, v6, 17, v5
    """)
    def reads(c, s, buf):
        f = FR[buf]; slot = c % 4
        xo = slot * 16384
        wreg = 12 + (slot >> 1); wo = (slot & 1) * 24576 + s * 2048
        R = [f"ds_read_b128 {vr(f,4)}, v{8+s} offset:{xo}"]
        R += [f"ds_read_b64_tr_b16 {vr(f+8+2*e,2)}, v{wreg} offset:{wo+e*512}" for e in range(2)]
        R += [f"ds_read_b128 {vr(f+4,4)}, v{8+s} offset:{xo+4096}"]
        R += [f"ds_read_b64_tr_b16 {vr(f+12+2*e,2)}, v{wreg} offset:{wo+8192+e*512}" for e in range(2)]
        R += [f"ds_read_b64_tr_b16 {vr(f+16+2*e,2)}, v{wreg} offset:{wo+16384+e*512}" for e in range(2)]
        return R
    a("s_barrier")
    stamp(a, 1)
    for r in reads(0, 0, 0): a(r)
    for n in range(32):
        c, s = divmod(n, 4)
        f = FR[n & 1]
        M = []
        for part in range(3):
            for b in range(2):
                d = ACC + 16 * (2 * part + b)
                x = vr(f + 4 * b, 4); w = vr(f + 8 + 4 * part, 4)
                A, B = (w, x) if part < 2 else (x, w)
                M.append(f"v_mfma_f32_32x32x16_bf16 {vr(d,16)}, {A}, {B}, {vr(d,16) if n else 0}")
        R = reads(*divmod(n + 1, 4), (n + 1) & 1) if n < 31 else []
        a("s_waitcnt lgkmcnt(0)")
        a(M[0])
        if s == 3 and n < 31: a("s_barrier")
        grp = [R[0:3], R[3:6], R[6:8], [], []]
        for i in range(5):
            for r in grp[i]: a(r)
            a(M[i + 1])
    stamp(a, 2)
    a(f"s_mov_b32 s41, {hex(QSCALE)}\ns_nop 6")
    T = 128
    for b in range(2):
        d = ACC + 16 * b
        for r in range(16): a(f"v_mul_f32 v{d+r}, s41, v{d+r}")
        for hd in range(2):
            t = T + 8 * b + 4 * hd
            for i in range(4): a(f"v_cvt_pk_bf16_f32 v{t+i}, v{d+8*hd+2*i}, v{d+8*hd+2*i+1}")
            a(f"s_add_u32 s42, s38, {hd*65536 + b*1024}")
            a(f"buffer_store_dwordx4 {vr(t,4)}, v14, s[28:31], s42 offen")
    for b in range(2):
        d = ACC + 32 + 16 * b
        for hd in range(2):
            t = T + 16 + 8 * b + 4 * hd
            for i in range(4): a(f"v_cvt_pk_bf16_f32 v{t+i}, v{d+8*hd+2*i}, v{d+8*hd+2*i+1}")
            a(f"s_add_u32 s42, s40, {hd*131072 + b*2048}")
            a(f"buffer_store_dwordx4 {vr(t,4)}, v15, s[28:31], s42 offen")
    for b in range(2):
        d = ACC + 64 + 16 * b
        for m in range(2):
            t = ACC + 8 * b + 4 * m
            for i in range(4): a(f"v_cvt_pk_bf16_f32 v{t+i}, v{d+8*m+2*i}, v{d+8*m+2*i+1}")
            a(f"s_add_u32 s42, s40, {b*2048 + 1024 + m*512}")
            a(f"buffer_store_dwordx4 {vr(t,4)}, v16, s[28:31], s42 offen")
    stamp(a, 3)
    stamp_flush(a, 0)
    a("s_endpgm")
    a("""
    K1_LOADER:
    s_sub_u32 s32, s16, 4
    v_lshrrev_b32 v1, 3, v0
    v_and_b32 v2, 7, v0
    v_lshrrev_b32 v3, 4, v0
    s_and_b32 s33, s32, 1
    s_lshl_b32 s33, s33, 2
    v_add_u32 v4, s33, v3
    v_xor_b32 v4, v4, v2
    v_lshlrev_b32 v4, 4, v4
    v_lshl_add_u32 v4, v1, 10, v4
    v_and_b32 v3, 1, v3
    v_lshlrev_b32 v3, 2, v3
    v_xor_b32 v3, v3, v2
    v_lshlrev_b32 v3, 4, v3
    v_mul_u32_u24 v5, 3072, v1
    v_add_u32 v5, v5, v3
    s_lshl_b32 s34, s18, 17
    s_lshl_b32 s35, s32, 13
    s_add_u32 s34, s34, s35
    s_mul_i32 s35, s32, 24576
    s_lshl_b32 s36, s19, 7
    s_add_u32 s35, s35, s36
    s_lshl_b32 s36, s32, 10
    """)
    def chunk(c):
        slot = c % 4
        for i in range(6):
            a(f"s_add_u32 m0, s36, {65536 + slot*24576 + i*4096}")
            a(f"s_add_u32 s37, s35, {(i&1)*32*3072 + (i>>1)*1024 + c*64*3072}")
            a("buffer_load_dwordx4 v5, s[24:27], s37 offen lds")
            if i < 4:
                a(f"s_add_u32 m0, s36, {slot*16384 + i*4096}")
                a(f"s_add_u32 s37, s34, {i*32768 + c*128}")
                a("buffer_load_dwordx4 v4, s[20:23], s37 offen lds")
    for c in range(4): chunk(c)
    a("s_waitcnt vmcnt(30)\ns_barrier\ns_waitcnt vmcnt(20)\ns_barrier")
    for c in range(4, 8):
        chunk(c)
        if c < 7: a("s_waitcnt vmcnt(20)\ns_barrier")
    srd(a, 40, 10, 1024)
    a("""
    v_lshlrev_b32 v1, 4, v0
    s_lshl_b32 s37, s2, 3
    s_lshl_b32 s38, s32, 1
    s_add_u32 s37, s37, s38
    s_lshl_b32 s38, s37, 10
    buffer_load_dwordx4 v[8:11], v1, s[40:43], 0 offen
    buffer_load_dwordx4 v[12:15], v1, s[20:23], s38 offen
    buffer_load_dwordx4 v[16:19], v1, s[20:23], s38 offen offset:1024
    s_waitcnt vmcnt(23)
    s_barrier
    s_waitcnt vmcnt(13)
    s_barrier
    s_waitcnt vmcnt(3)
    s_barrier
    s_waitcnt vmcnt(0)
    """)
    for i in range(4):
        a(f"v_lshlrev_b32 v{20+2*i}, 16, v{8+i}\nv_and_b32 v{21+2*i}, 0xffff0000, v{8+i}")
    for r in range(2):
        for i in range(4):
            a(f"v_lshlrev_b32 v28, 16, v{12+4*r+i}\nv_and_b32 v29, 0xffff0000, v{12+4*r+i}")
            a(f"v_mul_f32 v{30+r}, v28, v{20+2*i}" if i == 0 else f"v_fmac_f32 v{30+r}, v28, v{20+2*i}")
            a(f"v_fmac_f32 v{30+r}, v29, v{21+2*i}")
    for d in ("quad_perm:[1,0,3,2] row_mask:0xf", "quad_perm:[2,3,0,1] row_mask:0xf", "row_half_mirror row_mask:0xf",
              "row_mirror row_mask:0xf", "row_bcast:15 row_mask:0xa", "row_bcast:31 row_mask:0xc"):
        a("s_nop 1")
        a(f"v_add_f32_dpp v30, v30, v30 {d} bank_mask:0xf\nv_add_f32_dpp v31, v31, v31 {d} bank_mask:0xf")
    a(f"""
    v_mul_f32 v30, {hex(LOG2E | 0x80000000)}, v30
    v_mul_f32 v31, {hex(LOG2E | 0x80000000)}, v31
    v_exp_f32 v30, v30
    v_exp_f32 v31, v31
    s_nop 0
    v_add_f32 v30, 1.0, v30
    v_add_f32 v31, 1.0, v31
    v_rcp_f32 v30, v30
    v_rcp_f32 v31, v31
    s_lshl_b32 s38, s37, 2
    s_add_u32 s38, s38, {hex(G_OFF)}
    v_mov_b32 v1, 0
    v_cmp_eq_u32 vcc, 63, v0
    s_and_saveexec_b64 s[44:45], vcc
    buffer_store_dwordx2 v[30:31], v1, s[28:31], s38 offen
    K1_END:
    s_endpgm
    """)
    return lab, 168

SB, OA, QF, KF, VF, CF = 16, 80, 112, 120, 128, 144
POS = (2, 7, 11)
def att_init(a):
    for r in range(VF, VF + 16): a(f"v_mov_b32 v{r}, v13")
    for r in range(OA, OA + 32): a(f"v_mov_b32 v{r}, 0")
    for r in range(SB + 56, SB + 64): a(f"v_mov_b32 v{r}, 0")
    a("v_lshlrev_b32 v9, 4, v0\nv_mov_b32 v10, v14")
def att_start(a, creg):
    a(f"""
    ds_read_b128 {vr(KF,4)}, v9
    ds_read_b128 {vr(KF+4,4)}, v9 offset:2048
    s_mov_b64 exec, s[32:33]
    ds_read_b128 {vr(VF,4)}, v10 offset:1024
    ds_read_b128 {vr(VF+4,4)}, v10 offset:1536
    s_mov_b64 exec, -1
    s_waitcnt lgkmcnt(3)
    """)
    for q in range(2):
        c = vr(CF + 16 * q, 16) if creg else "0"
        a(f"v_mfma_f32_32x32x16_bf16 {vr(SB+16*q,16)}, {vr(KF,4)}, {vr(QF+4*q,4)}, {c}")
    a("s_nop 11")
def att_loop(a, tag, creg, nt=8):
    a(f"s_mov_b32 s40, {64 // nt}\n.p2align 6\n{tag}_LOOP:")
    for j in range(nt):
        kb_n = KF + 4 * ((j + 1) & 1); kb_nn = KF + 4 * (j & 1)
        vb = VF + 8 * (j & 1); vbn = VF + 8 * ((j + 1) & 1)
        for q in range(2):
            n = 2 * j + q
            cur = SB + 16 * (n % 4); prev = SB + 16 * ((n - 1) % 4); nxt = SB + 16 * ((n + 2) % 4)
            oprev = OA + 16 * (1 - q); ocur = OA + 16 * q
            vprev = (vbn if q == 0 else vb) + 4
            c = vr(CF + 16 * q, 16) if creg else "0"
            for e in range(16):
                if e == POS[0]:
                    a(f"v_smfmac_f32_32x32x32_bf16 {vr(oprev,16)}, {vr(vprev,4)}, {vr(prev+8,8)}, v8")
                    if q == 0:
                        a("s_mov_b64 exec, s[32:33]")
                        a(f"ds_read_b128 {vr(vbn,4)}, v10 offset:{(j+1)*2048+1024}")
                        a(f"ds_read_b128 {vr(vbn+4,4)}, v10 offset:{(j+1)*2048+1536}")
                        a("s_mov_b64 exec, -1")
                if e == POS[1]:
                    if q == 0: a("s_waitcnt lgkmcnt(2)")
                    a(f"v_mfma_f32_32x32x16_bf16 {vr(nxt,16)}, {vr(kb_n,4)}, {vr(QF+4*q,4)}, {c}")
                    if q == 1: a(f"ds_read_b128 {vr(kb_nn,4)}, v9 offset:{(j+2)*2048}")
                if e == POS[2]:
                    a(f"v_smfmac_f32_32x32x32_bf16 {vr(ocur,16)}, {vr(vb,4)}, {vr(cur,8)}, v8")
                a(f"v_exp_f32 v{cur+e}, v{cur+e}")
        if j == nt - 2 and not creg:
            a(f"s_cmp_lg_u32 s40, {64 // nt}\ns_cbranch_scc1 {tag}_NOBAR\ns_waitcnt vmcnt(0)\ns_barrier\n{tag}_NOBAR:")
    a(f"""
    v_add_u32 v9, {nt*2048}, v9
    v_add_u32 v10, {nt*2048}, v10
    s_sub_u32 s40, s40, 1
    s_cmp_lg_u32 s40, 0
    s_cbranch_scc1 {tag}_LOOP
    v_smfmac_f32_32x32x32_bf16 {vr(OA+16,16)}, {vr(VF+12,4)}, {vr(SB+56,8)}, v8
    s_waitcnt lgkmcnt(0)
    s_nop 11
    """)

def k2(a):
    lab = "attn_kernel"
    head(a, lab)
    a("""
    s_cmp_ge_u32 s2, 256
    s_cbranch_scc1 K2_END
    """)
    stamp(a, 0)
    a("""
    s_load_dwordx2 s[12:13], s[0:1], 72
    v_lshrrev_b32 v1, 6, v0
    v_and_b32 v0, 63, v0
    v_readfirstlane_b32 s16, v1
    s_and_b32 s17, s2, 7
    s_lshr_b32 s18, s2, 3
    s_lshl_b32 s17, s17, 3
    s_and_b32 s19, s18, 7
    s_add_u32 s17, s17, s19
    s_lshr_b32 s18, s18, 3
    s_lshl_b32 s18, s18, 4
    s_lshl_b32 s19, s16, 1
    s_add_u32 s18, s18, s19
    v_lshlrev_b32 v9, 4, v0
    v_and_b32 v1, 31, v0
    v_lshlrev_b32 v2, 2, v1
    s_waitcnt lgkmcnt(0)
    """)
    if FINE: stamp(a, 3)
    srd(a, 28, 12, WS_BYTES)
    a(f"""
    s_lshl_b32 s34, s17, 16
    s_lshl_b32 s35, s18, 10
    s_add_u32 s34, s34, s35
    s_add_u32 s34, s34, {hex(Q_OFF)}
    s_lshl_b32 s35, s18, 7
    s_add_u32 s35, s35, {hex(G_OFF)}
    s_lshl_b32 s36, s17, 17
    s_lshl_b32 s37, s16, 10
    s_add_u32 s36, s36, s37
    s_mov_b32 m0, s37
    buffer_load_dwordx4 {vr(QF,4)}, v9, s[28:31], s34 offen
    buffer_load_dwordx4 {vr(QF+4,4)}, v9, s[28:31], s34 offen offset:1024
    buffer_load_dwordx4 v9, s[28:31], s36 offen lds
    """)
    for i in range(1, 16):
        a(f"s_add_u32 m0, s37, {i*8192}\ns_add_u32 s38, s36, {i*8192}\nbuffer_load_dwordx4 v9, s[28:31], s38 offen lds")
    a(f"""
    buffer_load_dword v11, v2, s[28:31], s35 offen
    buffer_load_dword v12, v2, s[28:31], s35 offen offset:128
    v_mov_b32 v8, 0xdddddddd
    s_mov_b32 s32, 0x0000ffff
    s_mov_b32 s33, 0x0000ffff
    v_and_b32 v3, 27, v1
    v_mov_b32 v4, 0x3f803f80
    v_cmp_eq_u32 vcc, 16, v3
    v_and_b32 v14, 15, v0
    v_lshlrev_b32 v14, 4, v14
    v_cndmask_b32 v13, 0, v4, vcc
    v_lshrrev_b32 v3, 5, v0
    v_lshl_add_u32 v14, v3, 8, v14
    """)
    if FINE: stamp(a, 6)
    att_init(a)
    a("s_waitcnt vmcnt(15)\ns_barrier")
    stamp(a, 1); stamp(a, 4, True)
    att_start(a, False)
    att_loop(a, "K2F", False)
    stamp(a, 2); stamp(a, 5, True)
    a(f"""
    s_mov_b32 s42, 0x17800000
    s_mov_b32 s43, 0x67800000
    v_mov_b32 v3, 0x207
    v_cmp_lt_f32 vcc, s42, v{OA+8}
    v_cmp_lt_f32 s[44:45], s42, v{OA+24}
    v_cmp_gt_f32 s[46:47], s43, v{OA+8}
    v_cmp_gt_f32 s[48:49], s43, v{OA+24}
    s_and_b64 s[44:45], s[44:45], vcc
    s_and_b64 s[46:47], s[46:47], s[48:49]
    s_and_b64 s[44:45], s[44:45], s[46:47]
    """)
    for q in range(2):
        for r in range(8):
            a(f"v_cmp_class_f32 vcc, v{OA+16*q+r}, v3\ns_nop 0\ns_andn2_b64 s[44:45], s[44:45], vcc")
    a("s_cmp_eq_u64 s[44:45], -1\ns_cbranch_scc0 K2_SLOW\nK2_FIN:")
    a(f"""
    s_lshr_b32 s41, s17, 5
    s_cmp_eq_u32 s41, 0
    s_cselect_b32 s42, 1.0, -1.0
    s_cselect_b32 s43, 0, 1.0
    v_mov_b32 v3, s43
    v_rcp_f32 v4, v{OA+8}
    v_rcp_f32 v5, v{OA+24}
    v_fma_f32 v11, v11, s42, v3
    v_fma_f32 v12, v12, s42, v3
    v_mul_f32 v4, v4, v11
    v_mul_f32 v5, v5, v12
    s_lshl_b32 s34, s18, 16
    s_lshl_b32 s35, s17, 10
    s_add_u32 s34, s34, s35
    s_add_u32 s34, s34, {hex(O_OFF)}
    s_add_u32 s35, s34, 0x10000
    v_lshlrev_b32 v9, 4, v0
    """)
    for q in range(2):
        for r in range(8): a(f"v_mul_f32 v{OA+16*q+r}, v{OA+16*q+r}, v{4+q}")
        for i in range(4): a(f"v_cvt_pk_bf16_f32 v{SB+4*q+i}, v{OA+16*q+2*i}, v{OA+16*q+2*i+1}")
        a(f"buffer_store_dwordx4 {vr(SB+4*q,4)}, v9, s[28:31], s{34+q} offen")
    stamp_flush(a, 1)
    a("K2_END:\ns_endpgm")
    a(f"""
    K2_SLOW:
    v_lshlrev_b32 v9, 4, v0
    v_mov_b32 v4, 0xff800000
    v_mov_b32 v5, 0xff800000
    s_mov_b32 s40, 64
    K2_MAXLOOP:
    ds_read_b128 {vr(KF,4)}, v9
    v_add_u32 v9, 2048, v9
    s_waitcnt lgkmcnt(0)
    v_mfma_f32_32x32x16_bf16 {vr(SB,16)}, {vr(KF,4)}, {vr(QF,4)}, 0
    v_mfma_f32_32x32x16_bf16 {vr(SB+16,16)}, {vr(KF,4)}, {vr(QF+4,4)}, 0
    s_nop 11
    """)
    for q in range(2):
        for i in range(8): a(f"v_max3_f32 v{4+q}, v{4+q}, v{SB+16*q+2*i}, v{SB+16*q+2*i+1}")
    a(f"""
    s_sub_u32 s40, s40, 1
    s_cmp_lg_u32 s40, 0
    s_cbranch_scc1 K2_MAXLOOP
    v_mov_b32 v6, v4
    v_mov_b32 v7, v5
    s_nop 1
    v_permlane32_swap_b32 v4, v6
    v_permlane32_swap_b32 v5, v7
    s_nop 1
    v_max_f32 v4, v4, v6
    v_max_f32 v5, v5, v7
    """)
    for q in range(2):
        for r in range(16): a(f"v_sub_f32 v{CF+16*q+r}, 0, v{4+q}")
    att_init(a)
    att_start(a, True)
    att_loop(a, "K2S", True)
    a("s_branch K2_FIN")
    return lab, 176

def k3(a):
    lab = "oproj_kernel"
    head(a, lab)
    a("""
    s_cmp_ge_u32 s2, 256
    s_cbranch_scc1 K3_END
    """)
    stamp(a, 0)
    a("""
    s_load_dwordx2 s[4:5], s[0:1], 16
    s_load_dwordx2 s[6:7], s[0:1], 40
    s_load_dwordx2 s[8:9], s[0:1], 56
    s_load_dwordx2 s[12:13], s[0:1], 72
    v_lshrrev_b32 v1, 6, v0
    v_and_b32 v0, 63, v0
    v_readfirstlane_b32 s16, v1
    s_and_b32 s17, s2, 7
    s_lshr_b32 s18, s2, 3
    s_and_b32 s19, s18, 7
    s_lshr_b32 s18, s18, 3
    s_lshl_b32 s17, s17, 2
    s_add_u32 s17, s17, s18
    s_lshr_b32 s32, s16, 1
    s_and_b32 s33, s16, 1
    s_lshl_b32 s17, s17, 1
    s_add_u32 s17, s17, s33
    v_lshrrev_b32 v1, 3, v0
    v_and_b32 v2, 7, v0
    v_bfe_u32 v3, v0, 4, 1
    v_lshlrev_b32 v3, 1, v3
    v_xor_b32 v3, v3, v2
    v_lshlrev_b32 v3, 4, v3
    v_lshl_add_u32 v5, v1, 10, v3
    v_lshlrev_b32 v4, 4, v0
    s_cmp_eq_u32 s32, 1
    s_waitcnt lgkmcnt(0)
    s_cselect_b32 s4, s6, s4
    s_cselect_b32 s5, s7, s5
    """)
    if FINE: stamp(a, 3)
    srd(a, 20, 4, 512 * 1024)
    srd(a, 24, 8, 2048 * 1024)
    srd(a, 28, 12, WS_BYTES)
    a(f"""
    s_lshl_b32 s34, s33, 13
    s_lshl_b32 s35, s19, 7
    s_add_u32 s34, s34, s35
    s_lshl_b32 s35, s32, 16
    s_lshl_b32 s36, s33, 10
    s_add_u32 s35, s35, s36
    s_lshl_b32 s36, s17, 16
    s_lshl_b32 s37, s32, 15
    s_add_u32 s36, s36, s37
    s_add_u32 s36, s36, {hex(O_OFF)}
    """)
    OF, ACC, WF = 64, 32, 192
    def stage(st):
        for i in range(8):
            p = 16 * st + 2 * i
            a(f"s_add_u32 m0, s35, {p*1024}\ns_add_u32 s37, s34, {p*8192}\nbuffer_load_dwordx4 v5, s[20:23], s37 offen lds")
            s = 8 * st + i
            if i % 4 == 0: a(f"s_add_u32 s38, s36, {s*1024}")
            a(f"buffer_load_dwordx4 {vr(OF+4*s,4)}, v4, s[28:31], s38 offen offset:{(i%4)*1024}")
    for st in range(3): stage(st)
    if FINE: stamp(a, 6)
    a("""
    v_lshrrev_b32 v1, 5, v0
    v_bfe_u32 v2, v0, 2, 2
    v_lshl_add_u32 v6, v1, 2, v2
    v_lshlrev_b32 v6, 7, v6
    v_and_b32 v3, 1, v0
    v_lshl_add_u32 v6, v3, 6, v6
    v_bfe_u32 v3, v0, 4, 1
    v_lshl_add_u32 v6, v3, 4, v6
    v_bfe_u32 v3, v0, 1, 1
    v_lshl_add_u32 v6, v3, 3, v6
    s_lshl_b32 s37, s32, 16
    v_add_u32 v6, s37, v6
    v_lshrrev_b32 v2, 1, v2
    v_lshl_add_u32 v8, v2, 5, v6
    v_xor_b32 v9, 32, v8
    v_and_b32 v2, 31, v0
    v_lshlrev_b32 v10, 10, v2
    v_lshl_add_u32 v10, v1, 6, v10
    """)
    def reads(s):
        f = WF + 8 * (s & 1)
        return [f"ds_read_b64_tr_b16 {vr(f+4*c+2*e,2)}, v{8+c} offset:{s*2048+e*1024}" for c in range(2) for e in range(2)]
    a("s_waitcnt vmcnt(32)\ns_barrier")
    stamp(a, 1)
    for r in reads(0): a(r)
    stage(3)
    for s in range(32):
        f = WF + 8 * (s & 1)
        M = [f"v_mfma_f32_32x32x16_bf16 {vr(ACC+16*c,16)}, {vr(f+4*c,4)}, {vr(OF+4*s,4)}, {vr(ACC+16*c,16) if s else 0}" for c in range(2)]
        a("s_waitcnt lgkmcnt(0)")
        if s % 8 == 7 and s < 31:
            a(M[0])
            a(f"s_waitcnt vmcnt({32 - 16 * (s // 8)})\ns_barrier")
            for r in reads(s + 1): a(r)
            a(M[1])
        else:
            R = reads(s + 1) if s < 31 else []
            for r in R: a(r)
            a(M[0]); a(M[1])
    stamp(a, 2)
    a(f"""
    s_lshl_b32 s37, s16, 12
    s_add_u32 s37, s37, 0x20000
    v_add_u32 v6, s37, v4
    v_xor_b32 v7, 0x2000, v6
    s_cmp_eq_u32 s32, 0
    s_cbranch_scc1 K3_B0
    s_nop 6
    """)
    def xchg(keep):
        give = ACC + 16 * (1 - keep); kp = ACC + 16 * keep
        for i in range(4): a(f"ds_write_b128 v6, {vr(give+4*i,4)} offset:{i*1024}")
        a("s_waitcnt lgkmcnt(0)\ns_barrier")
        for i in range(4): a(f"ds_read_b128 {vr(OF+4*i,4)}, v7 offset:{i*1024}")
        for i in range(4):
            a(f"s_waitcnt lgkmcnt({3-i})")
            for r in range(4): a(f"v_add_f32 v{kp+4*i+r}, v{kp+4*i+r}, v{OF+4*i+r}")
            for r in range(2): a(f"v_cvt_pk_bf16_f32 v{WF+2*i+r}, v{kp+4*i+2*r}, v{kp+4*i+2*r+1}")
    xchg(1)
    a("s_branch K3_ST\nK3_B0:\ns_nop 10")
    xchg(0)
    a(f"""
    K3_ST:
    s_lshl_b32 s37, s17, 15
    s_lshl_b32 s38, s19, 7
    s_add_u32 s37, s37, s38
    s_lshl_b32 s38, s32, 5
    s_add_u32 s37, s37, s38
    buffer_store_dwordx4 {vr(WF,4)}, v10, s[24:27], s37 offen
    buffer_store_dwordx4 {vr(WF+4,4)}, v10, s[24:27], s37 offen offset:16
    """)
    stamp_flush(a, 2)
    a("""
    K3_END:
    s_endpgm
    """)
    return lab, 208

def main(out):
    ref = open(f"cdna_kernels/{NAME}.s.ref").read().split("\n")
    hdr = [l for l in ref if l.startswith(";") and "@launch" not in l and "Override launch" not in l and "grid=ceil" not in l]
    a = Asm()
    ks = [(k1, 512, 163840), (k2, 512, 131072), (k3, 256, 147456)]
    descs = []
    launches = []
    for f, blk, lds in ks:
        lab, nv = f(a)
        if STAMPS: nv = 256
        descs.append(desc(lab, nv))
        launches.append(f"; @launch kernel={lab} grid=(256,1,1) block=({blk},1,1) lds={lds}")
    s = "\n".join(hdr + launches) + '\n.amdgcn_target "amdgcn-amd-amdhsa--gfx950"\n.text\n' + a.text()
    s += '.section .rodata,"a"\n' + "".join(descs)
    open(out, "w").write(s)

if __name__ == "__main__":
    args = [x for x in sys.argv[1:] if not x.startswith("--")]
    main(args[0] if args else f"cdna_kernels/{NAME}.s")
```

```python
import sys
NAME = "gated_mix__softmax_full_mha__softmax_full_mha__prompt"
KV_OFF, Q_OFF, O_OFF, G_OFF = 0, 8 << 20, 12 << 20, 16 << 20
WS_BYTES = G_OFF + 8192
QSCALE = 0x3EB8AA3B
LOG2E = 0x3FB8AA3B

class Asm:
    def __init__(self): self.L = []
    def __call__(self, s):
        for x in s.strip("\n").split("\n"):
            x = x.strip()
            if not x: continue
            self.L.append(x if x.endswith(":") or x.startswith(".") else "    " + x)
    def text(self): return "\n".join(self.L) + "\n"

def vr(a, n): return f"v[{a}:{a+n-1}]"

def srd(a, d, lo, nbytes):
    a(f"s_mov_b32 s{d}, s{lo}\ns_mov_b32 s{d+1}, s{lo+1}\ns_mov_b32 s{d+2}, {hex(nbytes)}\ns_mov_b32 s{d+3}, 0x00020000")

def head(a, label):
    a(f".globl {label}\n.p2align 8\n.type {label},@function\n{label}:")

STAMPS = "--stamps" in sys.argv
STAMP_OFF = 20 << 20
FINE = "--fine" in sys.argv
def stamp(a, slot, cyc=False):
    if STAMPS: a(f"{'s_memtime' if cyc else 's_memrealtime'} s[{64+2*slot}:{65+2*slot}]")
def stamp_flush(a, kidx, vt=240, tag=0):
    if not STAMPS: return
    a("s_waitcnt vmcnt(0)")
    stamp(a, 7)
    a(f"""
    s_load_dwordx2 s[96:97], s[0:1], 64
    s_load_dwordx2 s[88:89], s[0:1], 72
    s_waitcnt lgkmcnt(0)
    s_mov_b32 s98, 256
    s_mov_b32 s99, 0x00020000
    s_mov_b32 s90, {hex(STAMP_OFF + (1 << 20))}
    s_mov_b32 s91, 0x00020000
    s_mov_b64 exec, 1
    s_lshl_b32 s92, s2, 4
    s_add_u32 s92, s92, s16
    s_lshl_b32 s93, s92, 5
    s_add_u32 s93, s93, {hex(STAMP_OFF + kidx * 0x20000)}
    v_mov_b32 v{vt+8}, 0
    """)
    for i in range(8): a(f"v_mov_b32 v{vt+i}, s{64+2*i}")
    a(f"""
    buffer_store_dwordx4 v[{vt}:{vt+3}], v{vt+8}, s[88:91], s93 offen
    buffer_store_dwordx4 v[{vt+4}:{vt+7}], v{vt+8}, s[88:91], s93 offen offset:16
    s_cmp_lg_u32 s92, 0
    s_cbranch_scc1 STAMP_SKIP{kidx}_{tag}
    v_mov_b32 v{vt+3}, v{vt+7}
    buffer_store_dwordx4 v[{vt}:{vt+3}], v{vt+8}, s[96:99], 0 offen offset:{16*kidx}
    """)
    for k in range(kidx):
        a(f"""
        s_mov_b32 s93, {hex(STAMP_OFF + k * 0x20000)}
        s_waitcnt vmcnt(0)
        buffer_load_dwordx4 v[{vt}:{vt+3}], v{vt+8}, s[88:91], s93 offen
        buffer_load_dword v{vt+7}, v{vt+8}, s[88:91], s93 offen offset:28
        s_waitcnt vmcnt(0)
        v_mov_b32 v{vt+3}, v{vt+7}
        buffer_store_dwordx4 v[{vt}:{vt+3}], v{vt+8}, s[96:99], 0 offen offset:{16*k}
        """)
    a(f"""    STAMP_SKIP{kidx}_{tag}:
    s_waitcnt vmcnt(0)
    """)

def desc(label, nv):
    acc = (nv + 3) // 4 * 4
    return f""".p2align 6
.amdhsa_kernel {label}
  .amdhsa_next_free_vgpr {nv}
  .amdhsa_next_free_sgpr 102
  .amdhsa_accum_offset {acc}
  .amdhsa_group_segment_fixed_size 0
  .amdhsa_kernarg_size 80
  .amdhsa_user_sgpr_count 2
  .amdhsa_user_sgpr_kernarg_segment_ptr 1
  .amdhsa_system_sgpr_workgroup_id_x 1
.end_amdhsa_kernel
"""

def k1(a):
    lab = "qkv_kernel"
    head(a, lab)
    a("""
    s_cmp_ge_u32 s2, 256
    s_cbranch_scc1 K1_END
    """)
    stamp(a, 0)
    a("""
    s_load_dwordx4 s[4:7], s[0:1], 0
    s_load_dwordx2 s[8:9], s[0:1], 32
    s_load_dwordx2 s[10:11], s[0:1], 48
    s_load_dwordx2 s[12:13], s[0:1], 72
    v_lshrrev_b32 v1, 6, v0
    v_and_b32 v0, 63, v0
    v_readfirstlane_b32 s16, v1
    s_and_b32 s17, s2, 7
    s_lshr_b32 s18, s2, 3
    s_and_b32 s19, s18, 1
    s_lshl_b32 s17, s17, 1
    s_add_u32 s17, s17, s19
    s_lshr_b32 s18, s18, 1
    s_and_b32 s19, s17, 7
    s_cmp_ge_u32 s17, 8
    s_waitcnt lgkmcnt(0)
    s_cselect_b32 s6, s8, s6
    s_cselect_b32 s7, s9, s7
    """)
    if FINE: stamp(a, 6)
    srd(a, 20, 4, 2048 * 1024)
    srd(a, 24, 6, 512 * 3072)
    srd(a, 28, 12, WS_BYTES)
    a("s_cmp_ge_u32 s16, 4\ns_cbranch_scc1 K1_LOADER")
    ACC = 32
    FR = [128, 148]
    a("""
    s_lshr_b32 s32, s16, 1
    s_and_b32 s33, s16, 1
    v_and_b32 v1, 31, v0
    v_lshrrev_b32 v2, 5, v0
    v_bfe_u32 v3, v0, 1, 3
    v_lshlrev_b32 v4, 7, v1
    s_lshl_b32 s34, s32, 13
    v_add_u32 v4, s34, v4
    """)
    for s in range(4):
        a(f"v_add_u32 v5, {2*s}, v2\nv_xor_b32 v5, v5, v3\nv_lshl_add_u32 v{8+s}, v5, 4, v4")
    a("""
    v_bfe_u32 v5, v0, 2, 2
    v_lshl_add_u32 v6, v2, 3, v5
    v_lshlrev_b32 v6, 7, v6
    v_lshrrev_b32 v5, 1, v5
    v_xor_b32 v5, s33, v5
    v_lshl_add_u32 v6, v5, 6, v6
    v_bfe_u32 v5, v0, 4, 1
    v_lshl_add_u32 v6, v5, 5, v6
    v_and_b32 v5, 3, v0
    v_lshl_add_u32 v6, v5, 3, v6
    v_add_u32 v12, 0x10000, v6
    v_add_u32 v13, 0x1c000, v6
    """)
    a(f"""
    s_lshl_b32 s35, s17, 2
    s_lshl_b32 s36, s33, 1
    s_add_u32 s35, s35, s36
    s_lshl_b32 s36, s18, 2
    s_lshl_b32 s37, s32, 1
    s_add_u32 s36, s36, s37
    s_lshl_b32 s38, s35, 16
    s_lshl_b32 s39, s36, 10
    s_add_u32 s38, s38, s39
    s_add_u32 s38, s38, {hex(Q_OFF)}
    s_lshl_b32 s40, s35, 17
    s_lshl_b32 s39, s36, 11
    s_add_u32 s40, s40, s39
    v_lshlrev_b32 v14, 4, v0
    v_and_b32 v5, 0x33, v0
    v_bfe_u32 v6, v0, 2, 1
    v_lshl_or_b32 v5, v6, 3, v5
    v_bfe_u32 v6, v0, 3, 1
    v_lshl_or_b32 v5, v6, 2, v5
    v_lshlrev_b32 v15, 4, v5
    v_and_b32 v5, 15, v0
    v_lshlrev_b32 v5, 4, v5
    v_lshl_add_u32 v5, v2, 8, v5
    v_bfe_u32 v6, v0, 4, 1
    v_lshl_add_u32 v16, v6, 17, v5
    """)
    def reads(c, s, buf):
        f = FR[buf]; slot = c % 4
        xo = slot * 16384
        wreg = 12 + (slot >> 1); wo = (slot & 1) * 24576 + s * 2048
        R = [f"ds_read_b128 {vr(f,4)}, v{8+s} offset:{xo}"]
        R += [f"ds_read_b64_tr_b16 {vr(f+8+2*e,2)}, v{wreg} offset:{wo+e*512}" for e in range(2)]
        R += [f"ds_read_b128 {vr(f+4,4)}, v{8+s} offset:{xo+4096}"]
        R += [f"ds_read_b64_tr_b16 {vr(f+12+2*e,2)}, v{wreg} offset:{wo+8192+e*512}" for e in range(2)]
        R += [f"ds_read_b64_tr_b16 {vr(f+16+2*e,2)}, v{wreg} offset:{wo+16384+e*512}" for e in range(2)]
        return R
    a("s_barrier")
    stamp(a, 1)
    for r in reads(0, 0, 0): a(r)
    for n in range(32):
        c, s = divmod(n, 4)
        f = FR[n & 1]
        M = []
        for part in range(3):
            for b in range(2):
                d = ACC + 16 * (2 * part + b)
                x = vr(f + 4 * b, 4); w = vr(f + 8 + 4 * part, 4)
                A, B = (w, x) if part < 2 else (x, w)
                M.append(f"v_mfma_f32_32x32x16_bf16 {vr(d,16)}, {A}, {B}, {vr(d,16) if n else 0}")
        R = reads(*divmod(n + 1, 4), (n + 1) & 1) if n < 31 else []
        a("s_waitcnt lgkmcnt(0)")
        a(M[0])
        if s == 3 and n < 31: a("s_barrier")
        grp = [R[0:3], R[3:6], R[6:8], [], []]
        for i in range(5):
            for r in grp[i]: a(r)
            a(M[i + 1])
    stamp(a, 2)
    a(f"s_mov_b32 s41, {hex(QSCALE)}\ns_nop 6")
    T = 128
    for b in range(2):
        d = ACC + 16 * b
        for r in range(16): a(f"v_mul_f32 v{d+r}, s41, v{d+r}")
        for hd in range(2):
            t = T + 8 * b + 4 * hd
            for i in range(4): a(f"v_cvt_pk_bf16_f32 v{t+i}, v{d+8*hd+2*i}, v{d+8*hd+2*i+1}")
            a(f"s_add_u32 s42, s38, {hd*65536 + b*1024}")
            a(f"buffer_store_dwordx4 {vr(t,4)}, v14, s[28:31], s42 offen")
    for b in range(2):
        d = ACC + 32 + 16 * b
        for hd in range(2):
            t = T + 16 + 8 * b + 4 * hd
            for i in range(4): a(f"v_cvt_pk_bf16_f32 v{t+i}, v{d+8*hd+2*i}, v{d+8*hd+2*i+1}")
            a(f"s_add_u32 s42, s40, {hd*131072 + b*2048}")
            a(f"buffer_store_dwordx4 {vr(t,4)}, v15, s[28:31], s42 offen")
    for b in range(2):
        d = ACC + 64 + 16 * b
        for m in range(2):
            t = ACC + 8 * b + 4 * m
            for i in range(4): a(f"v_cvt_pk_bf16_f32 v{t+i}, v{d+8*m+2*i}, v{d+8*m+2*i+1}")
            a(f"s_add_u32 s42, s40, {b*2048 + 1024 + m*512}")
            a(f"buffer_store_dwordx4 {vr(t,4)}, v16, s[28:31], s42 offen")
    stamp(a, 3)
    stamp_flush(a, 0)
    a("s_endpgm")
    a("""
    K1_LOADER:
    s_sub_u32 s32, s16, 4
    v_lshrrev_b32 v1, 3, v0
    v_and_b32 v2, 7, v0
    v_lshrrev_b32 v3, 4, v0
    s_and_b32 s33, s32, 1
    s_lshl_b32 s33, s33, 2
    v_add_u32 v4, s33, v3
    v_xor_b32 v4, v4, v2
    v_lshlrev_b32 v4, 4, v4
    v_lshl_add_u32 v4, v1, 10, v4
    v_and_b32 v3, 1, v3
    v_lshlrev_b32 v3, 2, v3
    v_xor_b32 v3, v3, v2
    v_lshlrev_b32 v3, 4, v3
    v_mul_u32_u24 v5, 3072, v1
    v_add_u32 v5, v5, v3
    s_lshl_b32 s34, s18, 17
    s_lshl_b32 s35, s32, 13
    s_add_u32 s34, s34, s35
    s_mul_i32 s35, s32, 24576
    s_lshl_b32 s36, s19, 7
    s_add_u32 s35, s35, s36
    s_lshl_b32 s36, s32, 10
    """)
    def chunk(c):
        slot = c % 4
        for i in range(6):
            a(f"s_add_u32 m0, s36, {65536 + slot*24576 + i*4096}")
            a(f"s_add_u32 s37, s35, {(i&1)*32*3072 + (i>>1)*1024 + c*64*3072}")
            a("buffer_load_dwordx4 v5, s[24:27], s37 offen lds")
            if i < 4:
                a(f"s_add_u32 m0, s36, {slot*16384 + i*4096}")
                a(f"s_add_u32 s37, s34, {i*32768 + c*128}")
                a("buffer_load_dwordx4 v4, s[20:23], s37 offen lds")
    for c in range(4): chunk(c)
    a("s_waitcnt vmcnt(30)\ns_barrier\ns_waitcnt vmcnt(20)\ns_barrier")
    for c in range(4, 8):
        chunk(c)
        if c < 7: a("s_waitcnt vmcnt(20)\ns_barrier")
    srd(a, 40, 10, 1024)
    a("""
    v_lshlrev_b32 v1, 4, v0
    s_lshl_b32 s37, s2, 3
    s_lshl_b32 s38, s32, 1
    s_add_u32 s37, s37, s38
    s_lshl_b32 s38, s37, 10
    buffer_load_dwordx4 v[8:11], v1, s[40:43], 0 offen
    buffer_load_dwordx4 v[12:15], v1, s[20:23], s38 offen
    buffer_load_dwordx4 v[16:19], v1, s[20:23], s38 offen offset:1024
    s_waitcnt vmcnt(23)
    s_barrier
    s_waitcnt vmcnt(13)
    s_barrier
    s_waitcnt vmcnt(3)
    s_barrier
    s_waitcnt vmcnt(0)
    """)
    for i in range(4):
        a(f"v_lshlrev_b32 v{20+2*i}, 16, v{8+i}\nv_and_b32 v{21+2*i}, 0xffff0000, v{8+i}")
    for r in range(2):
        for i in range(4):
            a(f"v_lshlrev_b32 v28, 16, v{12+4*r+i}\nv_and_b32 v29, 0xffff0000, v{12+4*r+i}")
            a(f"v_mul_f32 v{30+r}, v28, v{20+2*i}" if i == 0 else f"v_fmac_f32 v{30+r}, v28, v{20+2*i}")
            a(f"v_fmac_f32 v{30+r}, v29, v{21+2*i}")
    for d in ("quad_perm:[1,0,3,2] row_mask:0xf", "quad_perm:[2,3,0,1] row_mask:0xf", "row_half_mirror row_mask:0xf",
              "row_mirror row_mask:0xf", "row_bcast:15 row_mask:0xa", "row_bcast:31 row_mask:0xc"):
        a("s_nop 1")
        a(f"v_add_f32_dpp v30, v30, v30 {d} bank_mask:0xf\nv_add_f32_dpp v31, v31, v31 {d} bank_mask:0xf")
    a(f"""
    v_mul_f32 v30, {hex(LOG2E | 0x80000000)}, v30
    v_mul_f32 v31, {hex(LOG2E | 0x80000000)}, v31
    v_exp_f32 v30, v30
    v_exp_f32 v31, v31
    s_nop 0
    v_add_f32 v30, 1.0, v30
    v_add_f32 v31, 1.0, v31
    v_rcp_f32 v30, v30
    v_rcp_f32 v31, v31
    s_lshl_b32 s38, s37, 2
    s_add_u32 s38, s38, {hex(G_OFF)}
    v_mov_b32 v1, 0
    v_cmp_eq_u32 vcc, 63, v0
    s_and_saveexec_b64 s[44:45], vcc
    buffer_store_dwordx2 v[30:31], v1, s[28:31], s38 offen
    K1_END:
    s_endpgm
    """)
    return lab, 168

SB, OA, QF, KF, VF, CF = 16, 80, 112, 120, 128, 144
POS = (2, 7, 11)
def att_init(a):
    for r in range(VF, VF + 16): a(f"v_mov_b32 v{r}, v13")
    for r in range(OA, OA + 32): a(f"v_mov_b32 v{r}, 0")
    for r in range(SB + 56, SB + 64): a(f"v_mov_b32 v{r}, 0")
    a("v_lshlrev_b32 v9, 4, v0\nv_mov_b32 v10, v14")
def att_start(a, creg):
    a(f"""
    ds_read_b128 {vr(KF,4)}, v9
    ds_read_b128 {vr(KF+4,4)}, v9 offset:2048
    s_mov_b64 exec, s[32:33]
    ds_read_b128 {vr(VF,4)}, v10 offset:1024
    ds_read_b128 {vr(VF+4,4)}, v10 offset:1536
    s_mov_b64 exec, -1
    s_waitcnt lgkmcnt(3)
    """)
    for q in range(2):
        c = vr(CF + 16 * q, 16) if creg else "0"
        a(f"v_mfma_f32_32x32x16_bf16 {vr(SB+16*q,16)}, {vr(KF,4)}, {vr(QF+4*q,4)}, {c}")
    a("s_nop 11")
def att_loop(a, tag, creg, nt=8):
    a(f"s_mov_b32 s40, {64 // nt}\n.p2align 6\n{tag}_LOOP:")
    for j in range(nt):
        kb_n = KF + 4 * ((j + 1) & 1); kb_nn = KF + 4 * (j & 1)
        vb = VF + 8 * (j & 1); vbn = VF + 8 * ((j + 1) & 1)
        for q in range(2):
            n = 2 * j + q
            cur = SB + 16 * (n % 4); prev = SB + 16 * ((n - 1) % 4); nxt = SB + 16 * ((n + 2) % 4)
            oprev = OA + 16 * (1 - q); ocur = OA + 16 * q
            vprev = (vbn if q == 0 else vb) + 4
            c = vr(CF + 16 * q, 16) if creg else "0"
            for e in range(16):
                if e == POS[0]:
                    a(f"v_smfmac_f32_32x32x32_bf16 {vr(oprev,16)}, {vr(vprev,4)}, {vr(prev+8,8)}, v8")
                    if q == 0:
                        a("s_mov_b64 exec, s[32:33]")
                        a(f"ds_read_b128 {vr(vbn,4)}, v10 offset:{(j+1)*2048+1024}")
                        a(f"ds_read_b128 {vr(vbn+4,4)}, v10 offset:{(j+1)*2048+1536}")
                        a("s_mov_b64 exec, -1")
                if e == POS[1]:
                    if q == 0: a("s_waitcnt lgkmcnt(2)")
                    a(f"v_mfma_f32_32x32x16_bf16 {vr(nxt,16)}, {vr(kb_n,4)}, {vr(QF+4*q,4)}, {c}")
                    if q == 1: a(f"ds_read_b128 {vr(kb_nn,4)}, v9 offset:{(j+2)*2048}")
                if e == POS[2]:
                    a(f"v_smfmac_f32_32x32x32_bf16 {vr(ocur,16)}, {vr(vb,4)}, {vr(cur,8)}, v8")
                a(f"v_exp_f32 v{cur+e}, v{cur+e}")
        if j == nt - 2 and not creg:
            a(f"s_cmp_lg_u32 s40, {64 // nt}\ns_cbranch_scc1 {tag}_NOBAR\ns_waitcnt vmcnt(0)\ns_barrier\n{tag}_NOBAR:")
    a(f"""
    v_add_u32 v9, {nt*2048}, v9
    v_add_u32 v10, {nt*2048}, v10
    s_sub_u32 s40, s40, 1
    s_cmp_lg_u32 s40, 0
    s_cbranch_scc1 {tag}_LOOP
    v_smfmac_f32_32x32x32_bf16 {vr(OA+16,16)}, {vr(VF+12,4)}, {vr(SB+56,8)}, v8
    s_waitcnt lgkmcnt(0)
    s_nop 11
    """)

def k2(a):
    lab = "attn_kernel"
    head(a, lab)
    a("""
    s_cmp_ge_u32 s2, 256
    s_cbranch_scc1 K2_END
    """)
    stamp(a, 0)
    a("""
    s_load_dwordx2 s[12:13], s[0:1], 72
    v_lshrrev_b32 v1, 6, v0
    v_and_b32 v0, 63, v0
    v_readfirstlane_b32 s16, v1
    s_and_b32 s17, s2, 7
    s_lshr_b32 s18, s2, 3
    s_lshl_b32 s17, s17, 3
    s_and_b32 s19, s18, 7
    s_add_u32 s17, s17, s19
    s_lshr_b32 s18, s18, 3
    s_lshl_b32 s18, s18, 4
    s_lshl_b32 s19, s16, 1
    s_add_u32 s18, s18, s19
    v_lshlrev_b32 v9, 4, v0
    v_and_b32 v1, 31, v0
    v_lshlrev_b32 v2, 2, v1
    s_waitcnt lgkmcnt(0)
    """)
    if FINE: stamp(a, 3)
    srd(a, 28, 12, WS_BYTES)
    a(f"""
    s_lshl_b32 s34, s17, 16
    s_lshl_b32 s35, s18, 10
    s_add_u32 s34, s34, s35
    s_add_u32 s34, s34, {hex(Q_OFF)}
    s_lshl_b32 s35, s18, 7
    s_add_u32 s35, s35, {hex(G_OFF)}
    s_lshl_b32 s36, s17, 17
    s_lshl_b32 s37, s16, 10
    s_add_u32 s36, s36, s37
    s_mov_b32 m0, s37
    buffer_load_dwordx4 {vr(QF,4)}, v9, s[28:31], s34 offen
    buffer_load_dwordx4 {vr(QF+4,4)}, v9, s[28:31], s34 offen offset:1024
    buffer_load_dwordx4 v9, s[28:31], s36 offen lds
    """)
    for i in range(1, 16):
        a(f"s_add_u32 m0, s37, {i*8192}\ns_add_u32 s38, s36, {i*8192}\nbuffer_load_dwordx4 v9, s[28:31], s38 offen lds")
    a(f"""
    buffer_load_dword v11, v2, s[28:31], s35 offen
    buffer_load_dword v12, v2, s[28:31], s35 offen offset:128
    v_mov_b32 v8, 0xdddddddd
    s_mov_b32 s32, 0x0000ffff
    s_mov_b32 s33, 0x0000ffff
    v_and_b32 v3, 27, v1
    v_mov_b32 v4, 0x3f803f80
    v_cmp_eq_u32 vcc, 16, v3
    v_and_b32 v14, 15, v0
    v_lshlrev_b32 v14, 4, v14
    v_cndmask_b32 v13, 0, v4, vcc
    v_lshrrev_b32 v3, 5, v0
    v_lshl_add_u32 v14, v3, 8, v14
    """)
    if FINE: stamp(a, 6)
    att_init(a)
    a("s_waitcnt vmcnt(15)\ns_barrier")
    stamp(a, 1); stamp(a, 4, True)
    att_start(a, False)
    att_loop(a, "K2F", False)
    stamp(a, 2); stamp(a, 5, True)
    a(f"""
    s_mov_b32 s42, 0x17800000
    s_mov_b32 s43, 0x67800000
    v_mov_b32 v3, 0x207
    v_cmp_lt_f32 vcc, s42, v{OA+8}
    v_cmp_lt_f32 s[44:45], s42, v{OA+24}
    v_cmp_gt_f32 s[46:47], s43, v{OA+8}
    v_cmp_gt_f32 s[48:49], s43, v{OA+24}
    s_and_b64 s[44:45], s[44:45], vcc
    s_and_b64 s[46:47], s[46:47], s[48:49]
    s_and_b64 s[44:45], s[44:45], s[46:47]
    """)
    for q in range(2):
        for r in range(8):
            a(f"v_cmp_class_f32 vcc, v{OA+16*q+r}, v3\ns_nop 0\ns_andn2_b64 s[44:45], s[44:45], vcc")
    a("s_cmp_eq_u64 s[44:45], -1\ns_cbranch_scc0 K2_SLOW\nK2_FIN:")
    a(f"""
    s_lshr_b32 s41, s17, 5
    s_cmp_eq_u32 s41, 0
    s_cselect_b32 s42, 1.0, -1.0
    s_cselect_b32 s43, 0, 1.0
    v_mov_b32 v3, s43
    v_rcp_f32 v4, v{OA+8}
    v_rcp_f32 v5, v{OA+24}
    v_fma_f32 v11, v11, s42, v3
    v_fma_f32 v12, v12, s42, v3
    v_mul_f32 v4, v4, v11
    v_mul_f32 v5, v5, v12
    s_lshl_b32 s34, s18, 16
    s_lshl_b32 s35, s17, 10
    s_add_u32 s34, s34, s35
    s_add_u32 s34, s34, {hex(O_OFF)}
    s_add_u32 s35, s34, 0x10000
    v_lshlrev_b32 v9, 4, v0
    """)
    for q in range(2):
        for r in range(8): a(f"v_mul_f32 v{OA+16*q+r}, v{OA+16*q+r}, v{4+q}")
        for i in range(4): a(f"v_cvt_pk_bf16_f32 v{SB+4*q+i}, v{OA+16*q+2*i}, v{OA+16*q+2*i+1}")
        a(f"buffer_store_dwordx4 {vr(SB+4*q,4)}, v9, s[28:31], s{34+q} offen")
    stamp_flush(a, 1)
    a("K2_END:\ns_endpgm")
    a(f"""
    K2_SLOW:
    v_lshlrev_b32 v9, 4, v0
    v_mov_b32 v4, 0xff800000
    v_mov_b32 v5, 0xff800000
    s_mov_b32 s40, 64
    K2_MAXLOOP:
    ds_read_b128 {vr(KF,4)}, v9
    v_add_u32 v9, 2048, v9
    s_waitcnt lgkmcnt(0)
    v_mfma_f32_32x32x16_bf16 {vr(SB,16)}, {vr(KF,4)}, {vr(QF,4)}, 0
    v_mfma_f32_32x32x16_bf16 {vr(SB+16,16)}, {vr(KF,4)}, {vr(QF+4,4)}, 0
    s_nop 11
    """)
    for q in range(2):
        for i in range(8): a(f"v_max3_f32 v{4+q}, v{4+q}, v{SB+16*q+2*i}, v{SB+16*q+2*i+1}")
    a(f"""
    s_sub_u32 s40, s40, 1
    s_cmp_lg_u32 s40, 0
    s_cbranch_scc1 K2_MAXLOOP
    v_mov_b32 v6, v4
    v_mov_b32 v7, v5
    s_nop 1
    v_permlane32_swap_b32 v4, v6
    v_permlane32_swap_b32 v5, v7
    s_nop 1
    v_max_f32 v4, v4, v6
    v_max_f32 v5, v5, v7
    """)
    for q in range(2):
        for r in range(16): a(f"v_sub_f32 v{CF+16*q+r}, 0, v{4+q}")
    att_init(a)
    att_start(a, True)
    att_loop(a, "K2S", True)
    a("s_branch K2_FIN")
    return lab, 176

def k3(a):
    lab = "oproj_kernel"
    head(a, lab)
    a("""
    s_cmp_ge_u32 s2, 256
    s_cbranch_scc1 K3_END
    """)
    stamp(a, 0)
    a("""
    s_load_dwordx2 s[4:5], s[0:1], 16
    s_load_dwordx2 s[6:7], s[0:1], 40
    s_load_dwordx2 s[8:9], s[0:1], 56
    s_load_dwordx2 s[12:13], s[0:1], 72
    v_lshrrev_b32 v1, 6, v0
    v_and_b32 v0, 63, v0
    v_readfirstlane_b32 s16, v1
    s_and_b32 s17, s2, 7
    s_lshr_b32 s18, s2, 3
    s_and_b32 s19, s18, 7
    s_lshr_b32 s18, s18, 3
    s_lshl_b32 s17, s17, 2
    s_add_u32 s17, s17, s18
    s_lshr_b32 s32, s16, 1
    s_and_b32 s33, s16, 1
    s_lshl_b32 s17, s17, 1
    s_add_u32 s17, s17, s33
    v_lshrrev_b32 v1, 3, v0
    v_and_b32 v2, 7, v0
    v_bfe_u32 v3, v0, 4, 1
    v_lshlrev_b32 v3, 1, v3
    v_xor_b32 v3, v3, v2
    v_lshlrev_b32 v3, 4, v3
    v_lshl_add_u32 v5, v1, 10, v3
    v_lshlrev_b32 v4, 4, v0
    s_cmp_eq_u32 s32, 1
    s_waitcnt lgkmcnt(0)
    s_cselect_b32 s4, s6, s4
    s_cselect_b32 s5, s7, s5
    """)
    if FINE: stamp(a, 3)
    srd(a, 20, 4, 512 * 1024)
    srd(a, 24, 8, 2048 * 1024)
    srd(a, 28, 12, WS_BYTES)
    a(f"""
    s_lshl_b32 s34, s33, 13
    s_lshl_b32 s35, s19, 7
    s_add_u32 s34, s34, s35
    s_lshl_b32 s35, s32, 16
    s_lshl_b32 s36, s33, 10
    s_add_u32 s35, s35, s36
    s_lshl_b32 s36, s17, 16
    s_lshl_b32 s37, s32, 15
    s_add_u32 s36, s36, s37
    s_add_u32 s36, s36, {hex(O_OFF)}
    """)
    OF, ACC, WF = 64, 32, 192
    def stage(st):
        for i in range(8):
            p = 16 * st + 2 * i
            a(f"s_add_u32 m0, s35, {p*1024}\ns_add_u32 s37, s34, {p*8192}\nbuffer_load_dwordx4 v5, s[20:23], s37 offen lds")
            s = 8 * st + i
            if i % 4 == 0: a(f"s_add_u32 s38, s36, {s*1024}")
            a(f"buffer_load_dwordx4 {vr(OF+4*s,4)}, v4, s[28:31], s38 offen offset:{(i%4)*1024}")
    for st in range(3): stage(st)
    if FINE: stamp(a, 6)
    a("""
    v_lshrrev_b32 v1, 5, v0
    v_bfe_u32 v2, v0, 2, 2
    v_lshl_add_u32 v6, v1, 2, v2
    v_lshlrev_b32 v6, 7, v6
    v_and_b32 v3, 1, v0
    v_lshl_add_u32 v6, v3, 6, v6
    v_bfe_u32 v3, v0, 4, 1
    v_lshl_add_u32 v6, v3, 4, v6
    v_bfe_u32 v3, v0, 1, 1
    v_lshl_add_u32 v6, v3, 3, v6
    s_lshl_b32 s37, s32, 16
    v_add_u32 v6, s37, v6
    v_lshrrev_b32 v2, 1, v2
    v_lshl_add_u32 v8, v2, 5, v6
    v_xor_b32 v9, 32, v8
    v_and_b32 v2, 31, v0
    v_lshlrev_b32 v10, 10, v2
    v_lshl_add_u32 v10, v1, 6, v10
    """)
    def reads(s):
        f = WF + 8 * (s & 1)
        return [f"ds_read_b64_tr_b16 {vr(f+4*c+2*e,2)}, v{8+c} offset:{s*2048+e*1024}" for c in range(2) for e in range(2)]
    a("s_waitcnt vmcnt(32)\ns_barrier")
    stamp(a, 1)
    for r in reads(0): a(r)
    stage(3)
    for s in range(32):
        f = WF + 8 * (s & 1)
        M = [f"v_mfma_f32_32x32x16_bf16 {vr(ACC+16*c,16)}, {vr(f+4*c,4)}, {vr(OF+4*s,4)}, {vr(ACC+16*c,16) if s else 0}" for c in range(2)]
        a("s_waitcnt lgkmcnt(0)")
        if s % 8 == 7 and s < 31:
            a(M[0])
            a(f"s_waitcnt vmcnt({32 - 16 * (s // 8)})\ns_barrier")
            for r in reads(s + 1): a(r)
            a(M[1])
        else:
            R = reads(s + 1) if s < 31 else []
            for r in R: a(r)
            a(M[0]); a(M[1])
    stamp(a, 2)
    a(f"""
    s_lshl_b32 s37, s16, 12
    s_add_u32 s37, s37, 0x20000
    v_add_u32 v6, s37, v4
    v_xor_b32 v7, 0x2000, v6
    s_cmp_eq_u32 s32, 0
    s_cbranch_scc1 K3_B0
    s_nop 6
    """)
    def xchg(keep):
        give = ACC + 16 * (1 - keep); kp = ACC + 16 * keep
        for i in range(4): a(f"ds_write_b128 v6, {vr(give+4*i,4)} offset:{i*1024}")
        a("s_waitcnt lgkmcnt(0)\ns_barrier")
        for i in range(4): a(f"ds_read_b128 {vr(OF+4*i,4)}, v7 offset:{i*1024}")
        for i in range(4):
            a(f"s_waitcnt lgkmcnt({3-i})")
            for r in range(4): a(f"v_add_f32 v{kp+4*i+r}, v{kp+4*i+r}, v{OF+4*i+r}")
            for r in range(2): a(f"v_cvt_pk_bf16_f32 v{WF+2*i+r}, v{kp+4*i+2*r}, v{kp+4*i+2*r+1}")
    xchg(1)
    a("s_branch K3_ST\nK3_B0:\ns_nop 10")
    xchg(0)
    a(f"""
    K3_ST:
    s_lshl_b32 s37, s17, 15
    s_lshl_b32 s38, s19, 7
    s_add_u32 s37, s37, s38
    s_lshl_b32 s38, s32, 5
    s_add_u32 s37, s37, s38
    buffer_store_dwordx4 {vr(WF,4)}, v10, s[24:27], s37 offen
    buffer_store_dwordx4 {vr(WF+4,4)}, v10, s[24:27], s37 offen offset:16
    """)
    stamp_flush(a, 2)
    a("""
    K3_END:
    s_endpgm
    """)
    return lab, 208

def main(out):
    ref = open(f"cdna_kernels/{NAME}.s.ref").read().split("\n")
    hdr = [l for l in ref if l.startswith(";") and "@launch" not in l and "Override launch" not in l and "grid=ceil" not in l]
    a = Asm()
    ks = [(k1, 512, 163840), (k2, 512, 131072), (k3, 256, 147456)]
    descs = []
    launches = []
    for f, blk, lds in ks:
        lab, nv = f(a)
        if STAMPS: nv = 256
        descs.append(desc(lab, nv))
        launches.append(f"; @launch kernel={lab} grid=(256,1,1) block=({blk},1,1) lds={lds}")
    s = "\n".join(hdr + launches) + '\n.amdgcn_target "amdgcn-amd-amdhsa--gfx950"\n.text\n' + a.text()
    s += '.section .rodata,"a"\n' + "".join(descs)
    open(out, "w").write(s)

if __name__ == "__main__":
    args = [x for x in sys.argv[1:] if not x.startswith("--")]
    main(args[0] if args else f"cdna_kernels/{NAME}.s")
```

```python
import sys
NAME = "gated_mix__softmax_full_mha__softmax_full_mha__prompt"
KV_OFF, Q_OFF, O_OFF, G_OFF = 0, 8 << 20, 12 << 20, 16 << 20
WS_BYTES = G_OFF + 8192
QSCALE = 0x3EB8AA3B
LOG2E = 0x3FB8AA3B

class Asm:
    def __init__(self): self.L = []
    def __call__(self, s):
        for x in s.strip("\n").split("\n"):
            x = x.strip()
            if not x: continue
            self.L.append(x if x.endswith(":") or x.startswith(".") else "    " + x)
    def text(self): return "\n".join(self.L) + "\n"

def vr(a, n): return f"v[{a}:{a+n-1}]"

def srd(a, d, lo, nbytes):
    a(f"s_mov_b32 s{d}, s{lo}\ns_mov_b32 s{d+1}, s{lo+1}\ns_mov_b32 s{d+2}, {hex(nbytes)}\ns_mov_b32 s{d+3}, 0x00020000")

def head(a, label):
    a(f".globl {label}\n.p2align 8\n.type {label},@function\n{label}:")

STAMPS = "--stamps" in sys.argv
STAMP_OFF = 20 << 20
FINE = "--fine" in sys.argv
K1FINE = "--k1fine" in sys.argv
MAP84 = "--map84" in sys.argv
VPF = "--vpf" in sys.argv
def stamp(a, slot, cyc=False):
    if STAMPS: a(f"{'s_memtime' if cyc else 's_memrealtime'} s[{64+2*slot}:{65+2*slot}]")
def stamp_flush(a, kidx, vt=240, tag=0):
    if not STAMPS: return
    a("s_waitcnt vmcnt(0)")
    stamp(a, 7)
    a(f"""
    s_load_dwordx2 s[96:97], s[0:1], 64
    s_load_dwordx2 s[88:89], s[0:1], 72
    s_waitcnt lgkmcnt(0)
    s_mov_b32 s98, 256
    s_mov_b32 s99, 0x00020000
    s_mov_b32 s90, {hex(STAMP_OFF + (1 << 20))}
    s_mov_b32 s91, 0x00020000
    s_mov_b64 exec, 1
    s_lshl_b32 s92, s2, 4
    s_add_u32 s92, s92, s16
    s_lshl_b32 s93, s92, 5
    s_add_u32 s93, s93, {hex(STAMP_OFF + kidx * 0x20000)}
    v_mov_b32 v{vt+8}, 0
    """)
    for i in range(8): a(f"v_mov_b32 v{vt+i}, s{64+2*i}")
    a(f"""
    buffer_store_dwordx4 v[{vt}:{vt+3}], v{vt+8}, s[88:91], s93 offen
    buffer_store_dwordx4 v[{vt+4}:{vt+7}], v{vt+8}, s[88:91], s93 offen offset:16
    s_cmp_lg_u32 s92, 0
    s_cbranch_scc1 STAMP_SKIP{kidx}_{tag}
    v_mov_b32 v{vt+3}, v{vt+7}
    buffer_store_dwordx4 v[{vt}:{vt+3}], v{vt+8}, s[96:99], 0 offen offset:{16*kidx}
    """)
    for k in range(kidx):
        a(f"""
        s_mov_b32 s93, {hex(STAMP_OFF + k * 0x20000)}
        s_waitcnt vmcnt(0)
        buffer_load_dwordx4 v[{vt}:{vt+3}], v{vt+8}, s[88:91], s93 offen
        buffer_load_dword v{vt+7}, v{vt+8}, s[88:91], s93 offen offset:28
        s_waitcnt vmcnt(0)
        v_mov_b32 v{vt+3}, v{vt+7}
        buffer_store_dwordx4 v[{vt}:{vt+3}], v{vt+8}, s[96:99], 0 offen offset:{16*k}
        """)
    a(f"""    STAMP_SKIP{kidx}_{tag}:
    s_waitcnt vmcnt(0)
    """)

def desc(label, nv):
    acc = (nv + 3) // 4 * 4
    return f""".p2align 6
.amdhsa_kernel {label}
  .amdhsa_next_free_vgpr {nv}
  .amdhsa_next_free_sgpr 102
  .amdhsa_accum_offset {acc}
  .amdhsa_group_segment_fixed_size 0
  .amdhsa_kernarg_size 80
  .amdhsa_user_sgpr_count 2
  .amdhsa_user_sgpr_kernarg_segment_ptr 1
  .amdhsa_system_sgpr_workgroup_id_x 1
.end_amdhsa_kernel
"""

def k1(a):
    lab = "qkv_kernel"
    head(a, lab)
    a("""
    s_cmp_ge_u32 s2, 256
    s_cbranch_scc1 K1_END
    """)
    stamp(a, 0)
    a("""
    s_load_dwordx4 s[4:7], s[0:1], 0
    s_load_dwordx2 s[8:9], s[0:1], 32
    s_load_dwordx2 s[10:11], s[0:1], 48
    s_load_dwordx2 s[12:13], s[0:1], 72
    v_lshrrev_b32 v1, 6, v0
    v_and_b32 v0, 63, v0
    v_readfirstlane_b32 s16, v1
    """)
    if MAP84:
        a("""
        s_and_b32 s14, s2, 7
        s_lshr_b32 s15, s2, 3
        s_and_b32 s18, s14, 1
        s_lshl_b32 s18, s18, 3
        s_and_b32 s46, s15, 7
        s_add_u32 s18, s18, s46
        s_lshr_b32 s17, s14, 1
        s_lshl_b32 s17, s17, 2
        s_lshr_b32 s47, s15, 3
        s_add_u32 s17, s17, s47
        """)
    else:
        a("""
        s_and_b32 s17, s2, 7
        s_lshr_b32 s18, s2, 3
        s_and_b32 s19, s18, 1
        s_lshl_b32 s17, s17, 1
        s_add_u32 s17, s17, s19
        s_lshr_b32 s18, s18, 1
        """)
    a("""
    s_and_b32 s19, s17, 7
    s_cmp_ge_u32 s17, 8
    s_waitcnt lgkmcnt(0)
    s_cselect_b32 s6, s8, s6
    s_cselect_b32 s7, s9, s7
    """)
    if FINE: stamp(a, 6)
    srd(a, 20, 4, 2048 * 1024)
    srd(a, 24, 6, 512 * 3072)
    srd(a, 28, 12, WS_BYTES)
    a("s_cmp_ge_u32 s16, 4\ns_cbranch_scc1 K1_LOADER")
    if VPF:
        a("""
        v_and_b32 v1, 7, v0
        v_lshrrev_b32 v2, 3, v0
        v_lshlrev_b32 v3, 10, v1
        v_lshl_add_u32 v3, v2, 7, v3
        s_lshl_b32 s48, s18, 17
        s_lshl_b32 s49, s47, 15
        s_add_u32 s48, s48, s49
        s_lshl_b32 s49, s16, 13
        s_add_u32 s48, s48, s49
        buffer_load_dword v200, v3, s[20:23], s48 offen
        v_mul_u32_u24 v3, 3072, v1
        v_and_b32 v4, 3, v2
        v_min_u32 v4, 2, v4
        v_lshl_add_u32 v3, v4, 10, v3
        v_lshrrev_b32 v4, 2, v2
        v_mul_u32_u24 v4, 196608, v4
        v_add_u32 v3, v3, v4
        s_mul_i32 s48, s46, 24576
        s_mul_i32 s49, s16, 393216
        s_add_u32 s48, s48, s49
        s_lshl_b32 s49, s19, 7
        s_add_u32 s48, s48, s49
        buffer_load_dword v201, v3, s[24:27], s48 offen
        s_barrier
        """)
    ACC = 32
    FR = [128, 148]
    a("""
    s_lshr_b32 s32, s16, 1
    s_and_b32 s33, s16, 1
    v_and_b32 v1, 31, v0
    v_lshrrev_b32 v2, 5, v0
    v_bfe_u32 v3, v0, 1, 3
    v_lshlrev_b32 v4, 7, v1
    s_lshl_b32 s34, s32, 13
    v_add_u32 v4, s34, v4
    """)
    for s in range(4):
        a(f"v_add_u32 v5, {2*s}, v2\nv_xor_b32 v5, v5, v3\nv_lshl_add_u32 v{8+s}, v5, 4, v4")
    a("""
    v_bfe_u32 v5, v0, 2, 2
    v_lshl_add_u32 v6, v2, 3, v5
    v_lshlrev_b32 v6, 7, v6
    v_lshrrev_b32 v5, 1, v5
    v_xor_b32 v5, s33, v5
    v_lshl_add_u32 v6, v5, 6, v6
    v_bfe_u32 v5, v0, 4, 1
    v_lshl_add_u32 v6, v5, 5, v6
    v_and_b32 v5, 3, v0
    v_lshl_add_u32 v6, v5, 3, v6
    v_add_u32 v12, 0x10000, v6
    v_add_u32 v13, 0x1c000, v6
    """)
    a(f"""
    s_lshl_b32 s35, s17, 2
    s_lshl_b32 s36, s33, 1
    s_add_u32 s35, s35, s36
    s_lshl_b32 s36, s18, 2
    s_lshl_b32 s37, s32, 1
    s_add_u32 s36, s36, s37
    s_lshl_b32 s38, s35, 16
    s_lshl_b32 s39, s36, 10
    s_add_u32 s38, s38, s39
    s_add_u32 s38, s38, {hex(Q_OFF)}
    s_lshl_b32 s40, s35, 17
    s_lshl_b32 s39, s36, 11
    s_add_u32 s40, s40, s39
    v_lshlrev_b32 v14, 4, v0
    v_and_b32 v5, 0x33, v0
    v_bfe_u32 v6, v0, 2, 1
    v_lshl_or_b32 v5, v6, 3, v5
    v_bfe_u32 v6, v0, 3, 1
    v_lshl_or_b32 v5, v6, 2, v5
    v_lshlrev_b32 v15, 4, v5
    v_and_b32 v5, 15, v0
    v_lshlrev_b32 v5, 4, v5
    v_lshl_add_u32 v5, v2, 8, v5
    v_bfe_u32 v6, v0, 4, 1
    v_lshl_add_u32 v16, v6, 17, v5
    """)
    def reads(c, s, buf):
        f = FR[buf]; slot = c % 4
        xo = slot * 16384
        wreg = 12 + (slot >> 1); wo = (slot & 1) * 24576 + s * 2048
        R = [f"ds_read_b128 {vr(f,4)}, v{8+s} offset:{xo}"]
        R += [f"ds_read_b64_tr_b16 {vr(f+8+2*e,2)}, v{wreg} offset:{wo+e*512}" for e in range(2)]
        R += [f"ds_read_b128 {vr(f+4,4)}, v{8+s} offset:{xo+4096}"]
        R += [f"ds_read_b64_tr_b16 {vr(f+12+2*e,2)}, v{wreg} offset:{wo+8192+e*512}" for e in range(2)]
        R += [f"ds_read_b64_tr_b16 {vr(f+16+2*e,2)}, v{wreg} offset:{wo+16384+e*512}" for e in range(2)]
        return R
    a("s_barrier")
    stamp(a, 1)
    for r in reads(0, 0, 0): a(r)
    for n in range(32):
        c, s = divmod(n, 4)
        f = FR[n & 1]
        M = []
        for part in range(3):
            for b in range(2):
                d = ACC + 16 * (2 * part + b)
                x = vr(f + 4 * b, 4); w = vr(f + 8 + 4 * part, 4)
                A, B = (w, x) if part < 2 else (x, w)
                M.append(f"v_mfma_f32_32x32x16_bf16 {vr(d,16)}, {A}, {B}, {vr(d,16) if n else 0}")
        R = reads(*divmod(n + 1, 4), (n + 1) & 1) if n < 31 else []
        a("s_waitcnt lgkmcnt(0)")
        a(M[0])
        if s == 3 and n < 31: a("s_barrier")
        if K1FINE and s == 3 and c in (0, 2, 4, 6): stamp(a, {0: 3, 2: 4, 4: 5, 6: 6}[c])
        grp = [R[0:3], R[3:6], R[6:8], [], []]
        for i in range(5):
            for r in grp[i]: a(r)
            a(M[i + 1])
    stamp(a, 2)
    a(f"s_mov_b32 s41, {hex(QSCALE)}\ns_nop 6")
    T = 128
    for b in range(2):
        d = ACC + 16 * b
        for r in range(16): a(f"v_mul_f32 v{d+r}, s41, v{d+r}")
        for hd in range(2):
            t = T + 8 * b + 4 * hd
            for i in range(4): a(f"v_cvt_pk_bf16_f32 v{t+i}, v{d+8*hd+2*i}, v{d+8*hd+2*i+1}")
            a(f"s_add_u32 s42, s38, {hd*65536 + b*1024}")
            a(f"buffer_store_dwordx4 {vr(t,4)}, v14, s[28:31], s42 offen")
    for b in range(2):
        d = ACC + 32 + 16 * b
        for hd in range(2):
            t = T + 16 + 8 * b + 4 * hd
            for i in range(4): a(f"v_cvt_pk_bf16_f32 v{t+i}, v{d+8*hd+2*i}, v{d+8*hd+2*i+1}")
            a(f"s_add_u32 s42, s40, {hd*131072 + b*2048}")
            a(f"buffer_store_dwordx4 {vr(t,4)}, v15, s[28:31], s42 offen")
    for b in range(2):
        d = ACC + 64 + 16 * b
        for m in range(2):
            t = ACC + 8 * b + 4 * m
            for i in range(4): a(f"v_cvt_pk_bf16_f32 v{t+i}, v{d+8*m+2*i}, v{d+8*m+2*i+1}")
            a(f"s_add_u32 s42, s40, {b*2048 + 1024 + m*512}")
            a(f"buffer_store_dwordx4 {vr(t,4)}, v16, s[28:31], s42 offen")
    if not K1FINE: stamp(a, 3)
    stamp_flush(a, 0)
    a("s_endpgm")
    a("""
    K1_LOADER:
    s_sub_u32 s32, s16, 4
    v_lshrrev_b32 v1, 3, v0
    v_and_b32 v2, 7, v0
    v_lshrrev_b32 v3, 4, v0
    s_and_b32 s33, s32, 1
    s_lshl_b32 s33, s33, 2
    v_add_u32 v4, s33, v3
    v_xor_b32 v4, v4, v2
    v_lshlrev_b32 v4, 4, v4
    v_lshl_add_u32 v4, v1, 10, v4
    v_and_b32 v3, 1, v3
    v_lshlrev_b32 v3, 2, v3
    v_xor_b32 v3, v3, v2
    v_lshlrev_b32 v3, 4, v3
    v_mul_u32_u24 v5, 3072, v1
    v_add_u32 v5, v5, v3
    s_lshl_b32 s34, s18, 17
    s_lshl_b32 s35, s32, 13
    s_add_u32 s34, s34, s35
    s_mul_i32 s35, s32, 24576
    s_lshl_b32 s36, s19, 7
    s_add_u32 s35, s35, s36
    s_lshl_b32 s36, s32, 10
    """)
    def chunk(c):
        slot = c % 4
        for i in range(6):
            a(f"s_add_u32 m0, s36, {65536 + slot*24576 + i*4096}")
            a(f"s_add_u32 s37, s35, {(i&1)*32*3072 + (i>>1)*1024 + c*64*3072}")
            a("buffer_load_dwordx4 v5, s[24:27], s37 offen lds")
            if i < 4:
                a(f"s_add_u32 m0, s36, {slot*16384 + i*4096}")
                a(f"s_add_u32 s37, s34, {i*32768 + c*128}")
                a("buffer_load_dwordx4 v4, s[20:23], s37 offen lds")
    if VPF: a("s_barrier")
    for c in range(4): chunk(c)
    a("s_waitcnt vmcnt(30)\ns_barrier\ns_waitcnt vmcnt(20)\ns_barrier")
    for c in range(4, 8):
        chunk(c)
        if c < 7: a("s_waitcnt vmcnt(20)\ns_barrier")
    srd(a, 40, 10, 1024)
    a("""
    v_lshlrev_b32 v1, 4, v0
    s_lshl_b32 s37, s2, 3
    s_lshl_b32 s38, s32, 1
    s_add_u32 s37, s37, s38
    s_lshl_b32 s38, s37, 10
    buffer_load_dwordx4 v[8:11], v1, s[40:43], 0 offen
    buffer_load_dwordx4 v[12:15], v1, s[20:23], s38 offen
    buffer_load_dwordx4 v[16:19], v1, s[20:23], s38 offen offset:1024
    s_waitcnt vmcnt(23)
    s_barrier
    s_waitcnt vmcnt(13)
    s_barrier
    s_waitcnt vmcnt(3)
    s_barrier
    s_waitcnt vmcnt(0)
    """)
    for i in range(4):
        a(f"v_lshlrev_b32 v{20+2*i}, 16, v{8+i}\nv_and_b32 v{21+2*i}, 0xffff0000, v{8+i}")
    for r in range(2):
        for i in range(4):
            a(f"v_lshlrev_b32 v28, 16, v{12+4*r+i}\nv_and_b32 v29, 0xffff0000, v{12+4*r+i}")
            a(f"v_mul_f32 v{30+r}, v28, v{20+2*i}" if i == 0 else f"v_fmac_f32 v{30+r}, v28, v{20+2*i}")
            a(f"v_fmac_f32 v{30+r}, v29, v{21+2*i}")
    for d in ("quad_perm:[1,0,3,2] row_mask:0xf", "quad_perm:[2,3,0,1] row_mask:0xf", "row_half_mirror row_mask:0xf",
              "row_mirror row_mask:0xf", "row_bcast:15 row_mask:0xa", "row_bcast:31 row_mask:0xc"):
        a("s_nop 1")
        a(f"v_add_f32_dpp v30, v30, v30 {d} bank_mask:0xf\nv_add_f32_dpp v31, v31, v31 {d} bank_mask:0xf")
    a(f"""
    v_mul_f32 v30, {hex(LOG2E | 0x80000000)}, v30
    v_mul_f32 v31, {hex(LOG2E | 0x80000000)}, v31
    v_exp_f32 v30, v30
    v_exp_f32 v31, v31
    s_nop 0
    v_add_f32 v30, 1.0, v30
    v_add_f32 v31, 1.0, v31
    v_rcp_f32 v30, v30
    v_rcp_f32 v31, v31
    s_lshl_b32 s38, s37, 2
    s_add_u32 s38, s38, {hex(G_OFF)}
    v_mov_b32 v1, 0
    v_cmp_eq_u32 vcc, 63, v0
    s_and_saveexec_b64 s[44:45], vcc
    buffer_store_dwordx2 v[30:31], v1, s[28:31], s38 offen
    K1_END:
    s_endpgm
    """)
    return lab, 208 if VPF else 168

SB, OA, QF, KF, VF, CF = 16, 80, 112, 120, 128, 144
POS = (2, 7, 11)
def att_init(a):
    for r in range(VF, VF + 16): a(f"v_mov_b32 v{r}, v13")
    for r in range(OA, OA + 32): a(f"v_mov_b32 v{r}, 0")
    for r in range(SB + 56, SB + 64): a(f"v_mov_b32 v{r}, 0")
    a("v_lshlrev_b32 v9, 4, v0\nv_mov_b32 v10, v14")
def att_start(a, creg):
    a(f"""
    ds_read_b128 {vr(KF,4)}, v9
    ds_read_b128 {vr(KF+4,4)}, v9 offset:2048
    s_mov_b64 exec, s[32:33]
    ds_read_b128 {vr(VF,4)}, v10 offset:1024
    ds_read_b128 {vr(VF+4,4)}, v10 offset:1536
    s_mov_b64 exec, -1
    s_waitcnt lgkmcnt(3)
    """)
    for q in range(2):
        c = vr(CF + 16 * q, 16) if creg else "0"
        a(f"v_mfma_f32_32x32x16_bf16 {vr(SB+16*q,16)}, {vr(KF,4)}, {vr(QF+4*q,4)}, {c}")
    a("s_nop 11")
def att_loop(a, tag, creg, nt=8):
    a(f"s_mov_b32 s40, {64 // nt}\n.p2align 6\n{tag}_LOOP:")
    for j in range(nt):
        kb_n = KF + 4 * ((j + 1) & 1); kb_nn = KF + 4 * (j & 1)
        vb = VF + 8 * (j & 1); vbn = VF + 8 * ((j + 1) & 1)
        for q in range(2):
            n = 2 * j + q
            cur = SB + 16 * (n % 4); prev = SB + 16 * ((n - 1) % 4); nxt = SB + 16 * ((n + 2) % 4)
            oprev = OA + 16 * (1 - q); ocur = OA + 16 * q
            vprev = (vbn if q == 0 else vb) + 4
            c = vr(CF + 16 * q, 16) if creg else "0"
            for e in range(16):
                if e == POS[0]:
                    a(f"v_smfmac_f32_32x32x32_bf16 {vr(oprev,16)}, {vr(vprev,4)}, {vr(prev+8,8)}, v8")
                    if q == 0:
                        a("s_mov_b64 exec, s[32:33]")
                        a(f"ds_read_b128 {vr(vbn,4)}, v10 offset:{(j+1)*2048+1024}")
                        a(f"ds_read_b128 {vr(vbn+4,4)}, v10 offset:{(j+1)*2048+1536}")
                        a("s_mov_b64 exec, -1")
                if e == POS[1]:
                    if q == 0: a("s_waitcnt lgkmcnt(2)")
                    a(f"v_mfma_f32_32x32x16_bf16 {vr(nxt,16)}, {vr(kb_n,4)}, {vr(QF+4*q,4)}, {c}")
                    if q == 1: a(f"ds_read_b128 {vr(kb_nn,4)}, v9 offset:{(j+2)*2048}")
                if e == POS[2]:
                    a(f"v_smfmac_f32_32x32x32_bf16 {vr(ocur,16)}, {vr(vb,4)}, {vr(cur,8)}, v8")
                a(f"v_exp_f32 v{cur+e}, v{cur+e}")
        if j == nt - 2 and not creg:
            a(f"s_cmp_lg_u32 s40, {64 // nt}\ns_cbranch_scc1 {tag}_NOBAR\ns_waitcnt vmcnt(0)\ns_barrier\n{tag}_NOBAR:")
    a(f"""
    v_add_u32 v9, {nt*2048}, v9
    v_add_u32 v10, {nt*2048}, v10
    s_sub_u32 s40, s40, 1
    s_cmp_lg_u32 s40, 0
    s_cbranch_scc1 {tag}_LOOP
    v_smfmac_f32_32x32x32_bf16 {vr(OA+16,16)}, {vr(VF+12,4)}, {vr(SB+56,8)}, v8
    s_waitcnt lgkmcnt(0)
    s_nop 11
    """)

def k2(a):
    lab = "attn_kernel"
    head(a, lab)
    a("""
    s_cmp_ge_u32 s2, 256
    s_cbranch_scc1 K2_END
    """)
    stamp(a, 0)
    a("""
    s_load_dwordx2 s[12:13], s[0:1], 72
    v_lshrrev_b32 v1, 6, v0
    v_and_b32 v0, 63, v0
    v_readfirstlane_b32 s16, v1
    s_and_b32 s17, s2, 7
    s_lshr_b32 s18, s2, 3
    s_lshl_b32 s17, s17, 3
    s_and_b32 s19, s18, 7
    s_add_u32 s17, s17, s19
    s_lshr_b32 s18, s18, 3
    s_lshl_b32 s18, s18, 4
    s_lshl_b32 s19, s16, 1
    s_add_u32 s18, s18, s19
    v_lshlrev_b32 v9, 4, v0
    v_and_b32 v1, 31, v0
    v_lshlrev_b32 v2, 2, v1
    s_waitcnt lgkmcnt(0)
    """)
    if FINE: stamp(a, 3)
    srd(a, 28, 12, WS_BYTES)
    a(f"""
    s_lshl_b32 s34, s17, 16
    s_lshl_b32 s35, s18, 10
    s_add_u32 s34, s34, s35
    s_add_u32 s34, s34, {hex(Q_OFF)}
    s_lshl_b32 s35, s18, 7
    s_add_u32 s35, s35, {hex(G_OFF)}
    s_lshl_b32 s36, s17, 17
    s_lshl_b32 s37, s16, 10
    s_add_u32 s36, s36, s37
    s_mov_b32 m0, s37
    buffer_load_dwordx4 {vr(QF,4)}, v9, s[28:31], s34 offen
    buffer_load_dwordx4 {vr(QF+4,4)}, v9, s[28:31], s34 offen offset:1024
    buffer_load_dwordx4 v9, s[28:31], s36 offen lds
    """)
    for i in range(1, 16):
        a(f"s_add_u32 m0, s37, {i*8192}\ns_add_u32 s38, s36, {i*8192}\nbuffer_load_dwordx4 v9, s[28:31], s38 offen lds")
    a(f"""
    buffer_load_dword v11, v2, s[28:31], s35 offen
    buffer_load_dword v12, v2, s[28:31], s35 offen offset:128
    v_mov_b32 v8, 0xdddddddd
    s_mov_b32 s32, 0x0000ffff
    s_mov_b32 s33, 0x0000ffff
    v_and_b32 v3, 27, v1
    v_mov_b32 v4, 0x3f803f80
    v_cmp_eq_u32 vcc, 16, v3
    v_and_b32 v14, 15, v0
    v_lshlrev_b32 v14, 4, v14
    v_cndmask_b32 v13, 0, v4, vcc
    v_lshrrev_b32 v3, 5, v0
    v_lshl_add_u32 v14, v3, 8, v14
    """)
    if FINE: stamp(a, 6)
    att_init(a)
    a("s_waitcnt vmcnt(15)\ns_barrier")
    stamp(a, 1); stamp(a, 4, True)
    att_start(a, False)
    att_loop(a, "K2F", False)
    stamp(a, 2); stamp(a, 5, True)
    a(f"""
    s_mov_b32 s42, 0x17800000
    s_mov_b32 s43, 0x67800000
    v_mov_b32 v3, 0x207
    v_cmp_lt_f32 vcc, s42, v{OA+8}
    v_cmp_lt_f32 s[44:45], s42, v{OA+24}
    v_cmp_gt_f32 s[46:47], s43, v{OA+8}
    v_cmp_gt_f32 s[48:49], s43, v{OA+24}
    s_and_b64 s[44:45], s[44:45], vcc
    s_and_b64 s[46:47], s[46:47], s[48:49]
    s_and_b64 s[44:45], s[44:45], s[46:47]
    """)
    for q in range(2):
        for r in range(8):
            a(f"v_cmp_class_f32 vcc, v{OA+16*q+r}, v3\ns_nop 0\ns_andn2_b64 s[44:45], s[44:45], vcc")
    a("s_cmp_eq_u64 s[44:45], -1\ns_cbranch_scc0 K2_SLOW\nK2_FIN:")
    a(f"""
    s_lshr_b32 s41, s17, 5
    s_cmp_eq_u32 s41, 0
    s_cselect_b32 s42, 1.0, -1.0
    s_cselect_b32 s43, 0, 1.0
    v_mov_b32 v3, s43
    v_rcp_f32 v4, v{OA+8}
    v_rcp_f32 v5, v{OA+24}
    v_fma_f32 v11, v11, s42, v3
    v_fma_f32 v12, v12, s42, v3
    v_mul_f32 v4, v4, v11
    v_mul_f32 v5, v5, v12
    s_lshl_b32 s34, s18, 16
    s_lshl_b32 s35, s17, 10
    s_add_u32 s34, s34, s35
    s_add_u32 s34, s34, {hex(O_OFF)}
    s_add_u32 s35, s34, 0x10000
    v_lshlrev_b32 v9, 4, v0
    """)
    for q in range(2):
        for r in range(8): a(f"v_mul_f32 v{OA+16*q+r}, v{OA+16*q+r}, v{4+q}")
        for i in range(4): a(f"v_cvt_pk_bf16_f32 v{SB+4*q+i}, v{OA+16*q+2*i}, v{OA+16*q+2*i+1}")
        a(f"buffer_store_dwordx4 {vr(SB+4*q,4)}, v9, s[28:31], s{34+q} offen")
    stamp_flush(a, 1)
    a("K2_END:\ns_endpgm")
    a(f"""
    K2_SLOW:
    v_lshlrev_b32 v9, 4, v0
    v_mov_b32 v4, 0xff800000
    v_mov_b32 v5, 0xff800000
    s_mov_b32 s40, 64
    K2_MAXLOOP:
    ds_read_b128 {vr(KF,4)}, v9
    v_add_u32 v9, 2048, v9
    s_waitcnt lgkmcnt(0)
    v_mfma_f32_32x32x16_bf16 {vr(SB,16)}, {vr(KF,4)}, {vr(QF,4)}, 0
    v_mfma_f32_32x32x16_bf16 {vr(SB+16,16)}, {vr(KF,4)}, {vr(QF+4,4)}, 0
    s_nop 11
    """)
    for q in range(2):
        for i in range(8): a(f"v_max3_f32 v{4+q}, v{4+q}, v{SB+16*q+2*i}, v{SB+16*q+2*i+1}")
    a(f"""
    s_sub_u32 s40, s40, 1
    s_cmp_lg_u32 s40, 0
    s_cbranch_scc1 K2_MAXLOOP
    v_mov_b32 v6, v4
    v_mov_b32 v7, v5
    s_nop 1
    v_permlane32_swap_b32 v4, v6
    v_permlane32_swap_b32 v5, v7
    s_nop 1
    v_max_f32 v4, v4, v6
    v_max_f32 v5, v5, v7
    """)
    for q in range(2):
        for r in range(16): a(f"v_sub_f32 v{CF+16*q+r}, 0, v{4+q}")
    att_init(a)
    att_start(a, True)
    att_loop(a, "K2S", True)
    a("s_branch K2_FIN")
    return lab, 176

def k3(a):
    lab = "oproj_kernel"
    head(a, lab)
    a("""
    s_cmp_ge_u32 s2, 256
    s_cbranch_scc1 K3_END
    """)
    stamp(a, 0)
    a("""
    s_load_dwordx2 s[4:5], s[0:1], 16
    s_load_dwordx2 s[6:7], s[0:1], 40
    s_load_dwordx2 s[8:9], s[0:1], 56
    s_load_dwordx2 s[12:13], s[0:1], 72
    v_lshrrev_b32 v1, 6, v0
    v_and_b32 v0, 63, v0
    v_readfirstlane_b32 s16, v1
    s_and_b32 s17, s2, 7
    s_lshr_b32 s18, s2, 3
    s_and_b32 s19, s18, 7
    s_lshr_b32 s18, s18, 3
    s_lshl_b32 s17, s17, 2
    s_add_u32 s17, s17, s18
    s_lshr_b32 s32, s16, 1
    s_and_b32 s33, s16, 1
    s_lshl_b32 s17, s17, 1
    s_add_u32 s17, s17, s33
    v_lshrrev_b32 v1, 3, v0
    v_and_b32 v2, 7, v0
    v_bfe_u32 v3, v0, 4, 1
    v_lshlrev_b32 v3, 1, v3
    v_xor_b32 v3, v3, v2
    v_lshlrev_b32 v3, 4, v3
    v_lshl_add_u32 v5, v1, 10, v3
    v_lshlrev_b32 v4, 4, v0
    s_cmp_eq_u32 s32, 1
    s_waitcnt lgkmcnt(0)
    s_cselect_b32 s4, s6, s4
    s_cselect_b32 s5, s7, s5
    """)
    if FINE: stamp(a, 3)
    srd(a, 20, 4, 512 * 1024)
    srd(a, 24, 8, 2048 * 1024)
    srd(a, 28, 12, WS_BYTES)
    a(f"""
    s_lshl_b32 s34, s33, 13
    s_lshl_b32 s35, s19, 7
    s_add_u32 s34, s34, s35
    s_lshl_b32 s35, s32, 16
    s_lshl_b32 s36, s33, 10
    s_add_u32 s35, s35, s36
    s_lshl_b32 s36, s17, 16
    s_lshl_b32 s37, s32, 15
    s_add_u32 s36, s36, s37
    s_add_u32 s36, s36, {hex(O_OFF)}
    """)
    OF, ACC, WF = 64, 32, 192
    def stage(st):
        for i in range(8):
            p = 16 * st + 2 * i
            a(f"s_add_u32 m0, s35, {p*1024}\ns_add_u32 s37, s34, {p*8192}\nbuffer_load_dwordx4 v5, s[20:23], s37 offen lds")
            s = 8 * st + i
            if i % 4 == 0: a(f"s_add_u32 s38, s36, {s*1024}")
            a(f"buffer_load_dwordx4 {vr(OF+4*s,4)}, v4, s[28:31], s38 offen offset:{(i%4)*1024}")
    for st in range(3): stage(st)
    if FINE: stamp(a, 6)
    a("""
    v_lshrrev_b32 v1, 5, v0
    v_bfe_u32 v2, v0, 2, 2
    v_lshl_add_u32 v6, v1, 2, v2
    v_lshlrev_b32 v6, 7, v6
    v_and_b32 v3, 1, v0
    v_lshl_add_u32 v6, v3, 6, v6
    v_bfe_u32 v3, v0, 4, 1
    v_lshl_add_u32 v6, v3, 4, v6
    v_bfe_u32 v3, v0, 1, 1
    v_lshl_add_u32 v6, v3, 3, v6
    s_lshl_b32 s37, s32, 16
    v_add_u32 v6, s37, v6
    v_lshrrev_b32 v2, 1, v2
    v_lshl_add_u32 v8, v2, 5, v6
    v_xor_b32 v9, 32, v8
    v_and_b32 v2, 31, v0
    v_lshlrev_b32 v10, 10, v2
    v_lshl_add_u32 v10, v1, 6, v10
    """)
    def reads(s):
        f = WF + 8 * (s & 1)
        return [f"ds_read_b64_tr_b16 {vr(f+4*c+2*e,2)}, v{8+c} offset:{s*2048+e*1024}" for c in range(2) for e in range(2)]
    a("s_waitcnt vmcnt(32)\ns_barrier")
    stamp(a, 1)
    for r in reads(0): a(r)
    stage(3)
    for s in range(32):
        f = WF + 8 * (s & 1)
        M = [f"v_mfma_f32_32x32x16_bf16 {vr(ACC+16*c,16)}, {vr(f+4*c,4)}, {vr(OF+4*s,4)}, {vr(ACC+16*c,16) if s else 0}" for c in range(2)]
        a("s_waitcnt lgkmcnt(0)")
        if s % 8 == 7 and s < 31:
            a(M[0])
            a(f"s_waitcnt vmcnt({32 - 16 * (s // 8)})\ns_barrier")
            for r in reads(s + 1): a(r)
            a(M[1])
        else:
            R = reads(s + 1) if s < 31 else []
            for r in R: a(r)
            a(M[0]); a(M[1])
    stamp(a, 2)
    a(f"""
    s_lshl_b32 s37, s16, 12
    s_add_u32 s37, s37, 0x20000
    v_add_u32 v6, s37, v4
    v_xor_b32 v7, 0x2000, v6
    s_cmp_eq_u32 s32, 0
    s_cbranch_scc1 K3_B0
    s_nop 6
    """)
    def xchg(keep):
        give = ACC + 16 * (1 - keep); kp = ACC + 16 * keep
        for i in range(4): a(f"ds_write_b128 v6, {vr(give+4*i,4)} offset:{i*1024}")
        a("s_waitcnt lgkmcnt(0)\ns_barrier")
        for i in range(4): a(f"ds_read_b128 {vr(OF+4*i,4)}, v7 offset:{i*1024}")
        for i in range(4):
            a(f"s_waitcnt lgkmcnt({3-i})")
            for r in range(4): a(f"v_add_f32 v{kp+4*i+r}, v{kp+4*i+r}, v{OF+4*i+r}")
            for r in range(2): a(f"v_cvt_pk_bf16_f32 v{WF+2*i+r}, v{kp+4*i+2*r}, v{kp+4*i+2*r+1}")
    xchg(1)
    a("s_branch K3_ST\nK3_B0:\ns_nop 10")
    xchg(0)
    a(f"""
    K3_ST:
    s_lshl_b32 s37, s17, 15
    s_lshl_b32 s38, s19, 7
    s_add_u32 s37, s37, s38
    s_lshl_b32 s38, s32, 5
    s_add_u32 s37, s37, s38
    buffer_store_dwordx4 {vr(WF,4)}, v10, s[24:27], s37 offen
    buffer_store_dwordx4 {vr(WF+4,4)}, v10, s[24:27], s37 offen offset:16
    """)
    stamp_flush(a, 2)
    a("""
    K3_END:
    s_endpgm
    """)
    return lab, 208

def main(out):
    ref = open(f"cdna_kernels/{NAME}.s.ref").read().split("\n")
    hdr = [l for l in ref if l.startswith(";") and "@launch" not in l and "Override launch" not in l and "grid=ceil" not in l]
    a = Asm()
    ks = [(k1, 512, 163840), (k2, 512, 131072), (k3, 256, 147456)]
    descs = []
    launches = []
    for f, blk, lds in ks:
        lab, nv = f(a)
        if STAMPS: nv = 256
        descs.append(desc(lab, nv))
        launches.append(f"; @launch kernel={lab} grid=(256,1,1) block=({blk},1,1) lds={lds}")
    s = "\n".join(hdr + launches) + '\n.amdgcn_target "amdgcn-amd-amdhsa--gfx950"\n.text\n' + a.text()
    s += '.section .rodata,"a"\n' + "".join(descs)
    open(out, "w").write(s)

if __name__ == "__main__":
    args = [x for x in sys.argv[1:] if not x.startswith("--")]
    main(args[0] if args else f"cdna_kernels/{NAME}.s")
```

```python
import sys
NAME = "gated_mix__softmax_full_mha__softmax_full_mha__prompt"
O_OFF, F1_OFF, F2_OFF = 8 << 20, 12 << 20, (12 << 20) + (128 << 10)
WS_BYTES = 13 << 20
QSCALE = 0x3EB8AA3B
LOG2E = 0x3FB8AA3B
SLOT = 45056
QX, STG, GP, LANDED, REL, XCH = 135168, 131072, 155648, 156672, 157696, 131072
OPT = {x[2:].split("=")[0]: (x.split("=")[1] if "=" in x else True) for x in sys.argv[1:] if x.startswith("--")}
STAMPS = "stamps" in OPT
STAMP_OFF = 20 << 20
SREG = [96, 84, 86, 88, 90, 92, 94, 98]

class Asm:
    def __init__(self): self.L = []
    def __call__(self, s):
        for x in s.strip("\n").split("\n"):
            x = x.strip()
            if not x: continue
            self.L.append(x if x.endswith(":") or x.startswith(".") else "    " + x)
    def text(self): return "\n".join(self.L) + "\n"

def vr(a, n): return f"v[{a}:{a+n-1}]"
def srd(a, d, lo, nbytes):
    a(f"s_mov_b32 s{d}, s{lo}\ns_mov_b32 s{d+1}, s{lo+1}\ns_mov_b32 s{d+2}, {hex(nbytes)}\ns_mov_b32 s{d+3}, 0x00020000")
def stamp(a, slot, cyc=False):
    if STAMPS: a(f"{'s_memtime' if cyc else 's_memrealtime'} s[{SREG[slot]}:{SREG[slot]+1}]")
def stamp_flush(a):
    if not STAMPS: return
    a("s_waitcnt vmcnt(0)")
    stamp(a, 7)
    a(f"""
    s_load_dwordx2 s[80:81], s[0:1], 72
    s_waitcnt lgkmcnt(0)
    s_mov_b32 s82, {hex(STAMP_OFF + (1 << 20))}
    s_mov_b32 s83, 0x00020000
    s_mov_b64 exec, 1
    s_lshl_b32 s78, s2, 4
    s_add_u32 s78, s78, s16
    s_lshl_b32 s79, s78, 5
    s_add_u32 s79, s79, {hex(STAMP_OFF)}
    v_mov_b32 v8, 0
    """)
    for i in range(8): a(f"v_mov_b32 v{16+i}, s{SREG[i]}")
    a("""
    buffer_store_dwordx4 v[16:19], v8, s[80:83], s79 offen
    buffer_store_dwordx4 v[20:23], v8, s[80:83], s79 offen offset:16
    s_waitcnt vmcnt(0)
    """)

SB, OA, QF, KF, VF = 16, 80, 144, 160, 168
RC = 192
POS = (2, 7, 11)
def spin(a):
    a("s_sub_u32 s101, s101, 1\ns_cbranch_scc1 K_END")

def prologue(a):
    a("""
    s_cmp_ge_u32 s2, 256
    s_cbranch_scc1 K_END
    """)
    stamp(a, 0)
    a("""
    s_load_dwordx4 s[4:7], s[0:1], 0
    s_load_dwordx2 s[8:9], s[0:1], 32
    s_load_dwordx2 s[10:11], s[0:1], 48
    s_load_dwordx4 s[12:15], s[0:1], 64
    v_lshrrev_b32 v1, 6, v0
    v_and_b32 v0, 63, v0
    v_readfirstlane_b32 s16, v1
    s_and_b32 s19, s2, 7
    s_lshr_b32 s3, s2, 3
    s_and_b32 s17, s19, 1
    s_lshl_b32 s17, s17, 2
    s_and_b32 s18, s3, 3
    s_add_u32 s17, s17, s18
    s_lshr_b32 s3, s3, 2
    s_lshr_b32 s19, s19, 1
    s_lshl_b32 s18, s19, 3
    s_add_u32 s18, s18, s3
    s_cmp_ge_u32 s18, 16
    s_waitcnt lgkmcnt(0)
    s_cselect_b32 s6, s8, s6
    s_cselect_b32 s7, s9, s7
    """)
    srd(a, 28, 14, WS_BYTES)
    a("s_mov_b32 s101, 0x100000")
    a("s_cmp_ge_u32 s16, 4\ns_cbranch_scc1 HELPER")

def compute_phase1(a):
    ACC = [QF, SB, 184, 200, 216, 232]
    FR = [32, 52]
    XA = 248
    a("""
    s_or_b32 s32, s2, s16
    s_cmp_lg_u32 s32, 0
    s_cbranch_scc1 C_NOTAG
    s_memrealtime s[32:33]
    s_mov_b32 s14, 256
    s_mov_b32 s15, 0x00020000
    v_mov_b32 v1, 0
    s_waitcnt lgkmcnt(0)
    s_or_b32 s32, s32, 1
    v_mov_b32 v2, s32
    v_mov_b32 v3, s33
    s_mov_b64 exec, 1
    buffer_store_dwordx2 v[2:3], v1, s[12:15], 0 offen sc1
    s_mov_b64 exec, -1
    C_NOTAG:
    """)
    a(f"""
    s_and_b32 s33, s16, 1
    v_and_b32 v5, 31, v0
    v_lshrrev_b32 v6, 5, v0
    v_bfe_u32 v7, v0, 1, 3
    v_lshlrev_b32 v9, 7, v5
    s_lshl_b32 s34, s16, 13
    v_add_u32 v9, s34, v9
    """)
    for s in range(4):
        a(f"v_add_u32 v10, {2*s}, v6\nv_xor_b32 v10, v10, v7\nv_lshl_add_u32 v{XA+s}, v10, 4, v9\nv_add_u32 v{XA+4+s}, {2*SLOT}, v{XA+s}")
    a(f"""
    v_bfe_u32 v9, v0, 2, 2
    v_lshl_add_u32 v9, v6, 3, v9
    v_lshlrev_b32 v9, 6, v9
    v_and_b32 v10, 3, v0
    v_lshl_add_u32 v9, v10, 3, v9
    v_bfe_u32 v10, v0, 4, 1
    v_lshl_add_u32 v1, v10, 5, v9
    v_add_u32 v1, 0x8000, v1
    v_add_u32 v2, {2*SLOT}, v1
    s_lshl_b32 s35, s33, 5
    v_xor_b32 v3, s35, v1
    v_add_u32 v4, {2*SLOT}, v3
    """)
    a(f"""
    s_lshl_b32 s35, s16, 8
    s_add_u32 s35, s35, {REL}
    v_lshlrev_b32 v13, 2, v0
    v_add_u32 v13, s35, v13
    v_mov_b32 v14, 0
    ds_write_b32 v13, v14
    v_and_b32 v11, 3, v0
    v_lshlrev_b32 v11, 8, v11
    v_add_u32 v11, {LANDED}, v11
    v_mov_b32 v8, 0xdddddddd
    v_and_b32 v9, 27, v5
    v_mov_b32 v10, 0x3f803f80
    v_cmp_eq_u32 vcc, 16, v9
    s_mov_b32 s36, 0x0000ffff
    s_mov_b32 s37, 0x0000ffff
    v_cndmask_b32 v12, 0, v10, vcc
    v_mov_b32 v14, 1
    v_lshlrev_b32 v15, 4, v0
    v_and_b32 v9, 0x33, v0
    v_bfe_u32 v10, v0, 2, 1
    v_lshl_or_b32 v9, v10, 3, v9
    v_bfe_u32 v10, v0, 3, 1
    v_lshl_or_b32 v9, v10, 2, v9
    v_lshlrev_b32 v9, 4, v9
    s_lshl_b32 s35, s33, 11
    v_add_u32 v10, s35, v9
    v_mov_b32 v9, v10
    """)
    for r in range(VF, VF + 16): a(f"v_mov_b32 v{r}, v12")
    for r in range(OA, OA + 64): a(f"v_mov_b32 v{r}, 0")
    for r in range(SB + 56, SB + 64): a(f"v_mov_b32 v{r}, 0")
    a(f"""
    v_and_b32 v7, 15, v0
    v_lshlrev_b32 v7, 4, v7
    v_lshl_add_u32 v7, v6, 9, v7
    v_bfe_u32 v6, v0, 4, 1
    v_lshl_add_u32 v6, v6, 11, v7
    v_add_u32 v6, s34, v6
    v_add_u32 v5, s34, v15
    s_lshl_b32 s35, s16, 11
    s_add_u32 s35, s35, {QX}
    v_add_u32 v7, s35, v15
    """)
    def reads(c, s, buf):
        f = FR[buf]; slot = c % 3
        hi = slot == 2
        so = 0 if hi else slot * SLOT
        xr = XA + s + (4 if hi else 0)
        w = 2 if hi else 1; wq = 4 if hi else 3
        wo = so + s * 1024
        R = [f"ds_read_b128 {vr(f,4)}, v{xr} offset:{so}"]
        R += [f"ds_read_b64_tr_b16 {vr(f+12+2*e,2)}, v{w} offset:{wo+4096+e*256}" for e in range(2)]
        R += [f"ds_read_b128 {vr(f+4,4)}, v{xr} offset:{so+4096}"]
        R += [f"ds_read_b64_tr_b16 {vr(f+16+2*e,2)}, v{w} offset:{wo+8192+e*256}" for e in range(2)]
        R += [f"ds_read_b64_tr_b16 {vr(f+8+2*e,2)}, v{wq} offset:{wo+e*256}" for e in range(2)]
        return R
    a("s_waitcnt lgkmcnt(0)\ns_barrier")
    stamp(a, 1)
    for r in reads(0, 0, 0): a(r)
    for n in range(32):
        c, s = divmod(n, 4)
        f = FR[n & 1]
        M = []
        for part in (1, 2, 0):
            for b in range(2):
                d = ACC[2 * part + b]
                x = vr(f + 4 * b, 4); w = vr(f + 8 + 4 * part, 4)
                A, B = (w, x) if part < 2 else (x, w)
                M.append(f"v_mfma_f32_32x32x16_bf16 {vr(d,16)}, {A}, {B}, {vr(d,16) if n else 0}")
        R = reads(*divmod(n + 1, 4), (n + 1) & 1) if n < 31 else []
        a("s_waitcnt lgkmcnt(0)")
        a(M[0])
        if s == 3 and n < 31: a("s_barrier")
        grp = [R[0:3], R[3:6], R[6:8], [], []]
        for i in range(5):
            for r in grp[i]: a(r)
            a(M[i + 1])
    stamp(a, 2)
    a(f"s_mov_b32 s40, {hex(QSCALE)}\ns_mov_b32 s41, s40\ns_nop 5")
    for b in range(2):
        d = ACC[2 + b]
        for hd in range(2):
            for i in range(4): a(f"v_cvt_pk_bf16_f32 v{d+8*hd+i}, v{d+8*hd+2*i}, v{d+8*hd+2*i+1}")
            a(f"ds_write_b128 v5, {vr(d+8*hd,4)} offset:{b*4096 + hd*2048}")
    for b in range(2):
        d = ACC[4 + b]
        for m in range(2):
            for i in range(4): a(f"v_cvt_pk_bf16_f32 v{d+8*m+i}, v{d+8*m+2*i}, v{d+8*m+2*i+1}")
            a(f"ds_write_b128 v6, {vr(d+8*m,4)} offset:{b*4096 + 1024 + m*256}")
    for b in range(2):
        d = ACC[b]
        for r in range(8, 16, 2): a(f"v_pk_mul_f32 {vr(d+r,2)}, {vr(d+r,2)}, s[40:41]")
        for i in range(4): a(f"v_cvt_pk_bf16_f32 v{KF+4*b+i}, v{d+8+2*i}, v{d+8+2*i+1}")
        a(f"ds_write_b128 v7, {vr(KF+4*b,4)} offset:{b*1024}")
    for b in range(2):
        d = ACC[b]
        for r in range(0, 8, 2): a(f"v_pk_mul_f32 {vr(d+r,2)}, {vr(d+r,2)}, s[40:41]")
        for i in range(4): a(f"v_cvt_pk_bf16_f32 v{QF+4*b+i}, v{d+2*i}, v{d+2*i+1}")
    a(f"""
    v_xor_b32 v7, 0x800, v7
    s_waitcnt lgkmcnt(0)
    s_barrier
    """)

def attention(a):
    a(f"""
    ds_read_b128 {vr(KF,4)}, v9
    ds_read_b128 {vr(QF+8,4)}, v7
    ds_read_b128 {vr(QF+12,4)}, v7 offset:1024
    s_mov_b64 exec, s[36:37]
    ds_read_b128 {vr(VF,4)}, v9 offset:1024
    ds_read_b128 {vr(VF+4,4)}, v9 offset:1280
    s_mov_b64 exec, -1
    s_mov_b32 s38, 0
    s_mov_b32 s39, 1
    s_mov_b32 s40, 8
    s_waitcnt lgkmcnt(4)
    """)
    for q in range(2):
        a(f"v_mfma_f32_32x32x16_bf16 {vr(SB+16*q,16)}, {vr(KF,4)}, {vr(QF+4*q,4)}, 0")
    a("s_waitcnt lgkmcnt(0)\ns_nop 10")
    stamp(a, 3); stamp(a, 5, True)
    a(".p2align 6\nA_LOOP:")
    for j in range(8):
        kb = KF + 4 * (j & 1); kbn = KF + 4 * ((j + 1) & 1)
        vb = VF + 8 * (j & 1); vbn = VF + 8 * ((j + 1) & 1)
        o = ((j + 1) % 8) * 4096
        post = {(0, 0): ["s_mov_b64 exec, s[36:37]", f"ds_read_b128 {vr(vbn,4)}, v9 offset:{o+1024}",
                         f"ds_read_b128 {vr(vbn+4,4)}, v9 offset:{o+1280}", "s_mov_b64 exec, -1"],
                (0, 2): [f"ds_read_b128 {vr(kbn,4)}, v9 offset:{o}"],
                (2, 0): ["s_waitcnt lgkmcnt(0)"]}
        if j == 6:
            post[(1, 0)] = ["ds_read_b32 v12, v11", "s_add_u32 s38, s38, 0x8000", "s_and_b32 s38, s38, 0x1ffff"]
            post[(2, 2)] = ["ds_add_u32 v13, v14"]
            post[(3, 0)] = ["v_add_u32 v9, s38, v10"]
            post[(3, 1)] = ["v_cmp_gt_u32 vcc, s39, v12"]
            post[(3, 2)] = ["s_cbranch_vccnz A_WAIT", "A_BACK:"]
        if j == 7:
            post[(1, 0)] = ["s_add_u32 s39, s39, 1", "s_min_u32 s39, s39, 7"]
            post[(1, 2)] = ["s_sub_u32 s40, s40, 1", "s_cmp_lg_u32 s40, 0"]
        for q in range(4):
            n = 4 * j + q
            cur = SB + 16 * (n % 4); prev = SB + 16 * ((n - 1) % 4); nxt = SB + 16 * ((n + 2) % 4)
            oprev = OA + 16 * ((q - 1) % 4); ocur = OA + 16 * q
            vprev = (vbn if q == 0 else vb) + 4
            q2 = (q + 2) % 4; k2 = kb if q < 2 else kbn
            M = [f"v_smfmac_f32_32x32x32_bf16 {vr(oprev,16)}, {vr(vprev,4)}, {vr(prev+8,8)}, v8",
                 f"v_mfma_f32_32x32x16_bf16 {vr(nxt,16)}, {vr(k2,4)}, {vr(QF+4*q2,4)}, 0",
                 f"v_smfmac_f32_32x32x32_bf16 {vr(ocur,16)}, {vr(vb,4)}, {vr(cur,8)}, v8"]
            for e in range(16):
                for m in range(3):
                    if e == POS[m]:
                        a(M[m])
                        for x in post.get((q, m), []): a(x)
                a(f"v_exp_f32 v{cur+e}, v{cur+e}")
    a(f"""
    s_cbranch_scc1 A_LOOP
    s_nop 0
    v_smfmac_f32_32x32x32_bf16 {vr(OA+48,16)}, {vr(VF+12,4)}, {vr(SB+56,8)}, v8
    """)
    stamp(a, 4); stamp(a, 6, True)
    a(f"""
    s_lshl_b32 s42, s17, 3
    s_lshl_b32 s43, s16, 1
    s_add_u32 s42, s42, s43
    s_lshl_b32 s42, s42, 16
    s_lshl_b32 s43, s18, 1
    s_add_u32 s43, s43, s33
    s_lshl_b32 s43, s43, 10
    s_add_u32 s42, s42, s43
    s_add_u32 s42, s42, {hex(O_OFF)}
    s_add_u32 s43, s42, 0x10000
    s_xor_b32 s44, s42, 0x20000
    s_xor_b32 s45, s43, 0x20000
    s_mov_b32 s46, 0x17800000
    s_mov_b32 s47, 0x67800000
    v_mov_b32 v2, 0
    v_mov_b32 v3, 0
    v_min3_f32 v4, v{OA+8}, v{OA+24}, v{OA+40}
    v_max3_f32 v5, v{OA+8}, v{OA+24}, v{OA+40}
    """)
    for q in range(4):
        for r in range(0, 8, 2): a(f"v_pk_fma_f32 v[2:3], {vr(OA+16*q+r,2)}, 0, v[2:3]")
    a(f"""
    v_min_f32 v4, v4, v{OA+56}
    v_max_f32 v5, v5, v{OA+56}
    v_add_f32 v2, v2, v3
    v_cmp_lt_f32 s[48:49], s46, v4
    v_cmp_gt_f32 s[50:51], s47, v5
    v_cmp_eq_f32 vcc, 0, v2
    """)
    for q in range(4): a(f"v_rcp_f32 v{RC+2*q}, v{OA+16*q+8}")
    a("""
    s_and_b64 s[48:49], s[48:49], s[50:51]
    s_and_b64 s[48:49], s[48:49], vcc
    s_cmp_eq_u64 s[48:49], -1
    s_cbranch_scc0 A_SLOW
    """)
    def norm(q, clamp):
        for r in range(0, 8, 2):
            a(f"v_pk_mul_f32 {vr(OA+16*q+r,2)}, {vr(OA+16*q+r,2)}, {vr(RC+2*q,2)} op_sel_hi:[1,0]")
        for i in range(4): a(f"v_cvt_pk_bf16_f32 v{SB+4*q+i}, v{OA+16*q+2*i}, v{OA+16*q+2*i+1}")
        if clamp:
            for i in range(4): a(f"v_min_u32 v{SB+4*q+i}, -2, v{SB+4*q+i}")
        a(f"buffer_store_dwordx4 {vr(SB+4*q,4)}, v15, s[28:31], s{42+q} offen sc1")
    for q in range(4): norm(q, False)
    a("A_DONE:")
    if "drain" in OPT: a("s_waitcnt vmcnt(0)")
    a("s_barrier\ns_barrier")
    stamp_flush(a)
    a("K_END:\ns_endpgm")
    a("A_WAIT:")
    spin(a)
    a("""
    ds_read_b32 v12, v11
    s_waitcnt lgkmcnt(0)
    v_cmp_gt_u32 vcc, s39, v12
    s_cbranch_vccnz A_WAIT
    s_branch A_BACK
    """)
    a(f"""
    A_SLOW:
    s_lshl_b32 s38, s18, 18
    s_mov_b32 s40, 64
    """)
    for q in range(4): a(f"v_mov_b32 v{184+q}, 0xff800000")
    a(f"""
    A_MAXLOOP:
    buffer_load_dwordx4 {vr(KF,4)}, v10, s[28:31], s38 offen sc1
    s_add_u32 s38, s38, 4096
    s_waitcnt vmcnt(0)
    """)
    for q in range(4): a(f"v_mfma_f32_32x32x16_bf16 {vr(SB+16*q,16)}, {vr(KF,4)}, {vr(QF+4*q,4)}, 0")
    a("s_nop 11")
    for q in range(4):
        for i in range(8): a(f"v_max3_f32 v{184+q}, v{184+q}, v{SB+16*q+2*i}, v{SB+16*q+2*i+1}")
    a("s_sub_u32 s40, s40, 1\ns_cmp_lg_u32 s40, 0\ns_cbranch_scc1 A_MAXLOOP")
    for q in range(4): a(f"v_mov_b32 v{188+q}, v{184+q}")
    a("s_nop 1")
    for q in range(4): a(f"v_permlane32_swap_b32 v{184+q}, v{188+q}")
    a("s_nop 1")
    for q in range(4): a(f"v_max_f32 v{184+q}, v{184+q}, v{188+q}")
    for r in range(OA, OA + 64): a(f"v_mov_b32 v{r}, 0")
    a(f"""
    s_lshl_b32 s38, s18, 18
    s_mov_b32 s40, 64
    A_EXPLOOP:
    buffer_load_dwordx4 {vr(KF,4)}, v10, s[28:31], s38 offen sc1
    s_mov_b64 exec, s[36:37]
    buffer_load_dwordx4 {vr(VF,4)}, v10, s[28:31], s38 offen offset:1024 sc1
    buffer_load_dwordx4 {vr(VF+4,4)}, v10, s[28:31], s38 offen offset:1280 sc1
    s_mov_b64 exec, -1
    s_add_u32 s38, s38, 4096
    s_waitcnt vmcnt(0)
    """)
    for q in range(4): a(f"v_mfma_f32_32x32x16_bf16 {vr(SB+16*q,16)}, {vr(KF,4)}, {vr(QF+4*q,4)}, 0")
    a("s_nop 11")
    for q in range(4):
        for e in range(16): a(f"v_sub_f32 v{SB+16*q+e}, v{SB+16*q+e}, v{184+q}")
        for e in range(16): a(f"v_exp_f32 v{SB+16*q+e}, v{SB+16*q+e}")
        a("s_nop 1")
        a(f"v_smfmac_f32_32x32x32_bf16 {vr(OA+16*q,16)}, {vr(VF,4)}, {vr(SB+16*q,8)}, v8")
        a(f"v_smfmac_f32_32x32x32_bf16 {vr(OA+16*q,16)}, {vr(VF+4,4)}, {vr(SB+16*q+8,8)}, v8")
    a("s_sub_u32 s40, s40, 1\ns_cmp_lg_u32 s40, 0\ns_cbranch_scc1 A_EXPLOOP\ns_nop 11")
    for q in range(4): a(f"v_rcp_f32 v{RC+2*q}, v{OA+16*q+8}")
    a("s_nop 0")
    for q in range(4): norm(q, True)
    a("s_branch A_DONE")

def helper(a):
    GW = 128
    a("""
    HELPER:
    s_sub_u32 s16, s16, 4
    s_lshl_b32 s8, s16, 5
    s_add_u32 s10, s10, s8
    s_addc_u32 s11, s11, 0
    """)
    for c in range(8): a(f"s_load_dwordx8 s[{32+8*c}:{39+8*c}], s[10:11], {c*128}")
    srd(a, 20, 4, 2048 * 1024)
    srd(a, 24, 6, 512 * 3072)
    a("""
    s_mov_b32 s14, 256
    s_mov_b32 s15, 0x00020000
    v_lshrrev_b32 v1, 3, v0
    v_and_b32 v2, 7, v0
    v_lshrrev_b32 v3, 4, v0
    s_and_b32 s4, s16, 1
    s_lshl_b32 s4, s4, 2
    v_add_u32 v4, s4, v3
    v_xor_b32 v4, v4, v2
    v_lshlrev_b32 v4, 4, v4
    v_lshl_add_u32 v4, v1, 10, v4
    v_lshrrev_b32 v1, 2, v0
    v_mul_u32_u24 v5, 3072, v1
    v_and_b32 v2, 3, v0
    v_lshl_add_u32 v5, v2, 4, v5
    s_lshl_b32 s4, s17, 18
    s_lshl_b32 s5, s16, 13
    s_add_u32 s4, s4, s5
    s_mul_i32 s5, s16, 49152
    s_and_b32 s6, s18, 15
    s_lshl_b32 s6, s6, 6
    s_add_u32 s5, s5, s6
    s_lshl_b32 s6, s16, 10
    """)
    def chunk(c):
        so = (c % 3) * SLOT
        for i in range(8):
            if i < 3:
                part = (1, 2, 0)[i]
                a(f"s_add_u32 m0, s6, {so + 32768 + part*4096}")
                a(f"s_add_u32 s7, s5, {part*1024 + c*64*3072}")
                a("buffer_load_dwordx4 v5, s[24:27], s7 offen lds")
            a(f"s_add_u32 m0, s6, {so + i*4096}")
            a(f"s_add_u32 s7, s4, {i*32768 + c*128}")
            a("buffer_load_dwordx4 v4, s[20:23], s7 offen lds")
    for c in range(3): chunk(c)
    a(f"""
    s_lshl_b32 s7, s16, 8
    s_add_u32 s8, s7, {LANDED}
    v_lshlrev_b32 v13, 2, v0
    v_add_u32 v12, s8, v13
    v_mov_b32 v6, 0
    ds_write_b32 v12, v6
    s_add_u32 s8, s7, {GP}
    v_add_u32 v13, s8, v13
    v_bfe_u32 v1, v0, 1, 3
    s_lshl_b32 s8, s16, 1
    v_xor_b32 v1, s8, v1
    v_lshlrev_b32 v1, 4, v1
    v_lshl_add_u32 v1, v0, 7, v1
    s_lshl_b32 s8, s19, 13
    v_add_u32 v7, s8, v1
    v_xor_b32 v8, 16, v7
    v_add_u32 v9, {2*SLOT}, v7
    v_add_u32 v10, {2*SLOT}, v8
    v_mov_b32 v11, 0
    s_waitcnt lgkmcnt(0)
    """)
    for i in range(64): a(f"v_mov_b32 v{GW+i}, s{32+i}")
    def gate(c):
        hi = c % 3 == 2
        so = 0 if hi else (c % 3) * SLOT
        a(f"ds_read_b128 v[16:19], v{9 if hi else 7} offset:{so}\nds_read_b128 v[20:23], v{10 if hi else 8} offset:{so}")
        a("s_waitcnt lgkmcnt(0)")
        for i in range(8): a(f"v_dot2_f32_bf16 v6, v{16+i}, v{GW+8*c+i}, v6")
    a("s_waitcnt vmcnt(22)\ns_barrier")
    stamp(a, 1)
    for c in range(7):
        if 1 <= c <= 5: chunk(c + 2)
        if c == 5: a("buffer_load_dwordx2 v[2:3], v11, s[12:15], 0 offen sc1")
        gate(c)
        a(f"s_waitcnt vmcnt({11 if c < 5 else 12 if c == 5 else 1})\ns_barrier")
    gate(7)
    a(f"""
    s_load_dwordx2 s[4:5], s[0:1], 16
    s_load_dwordx2 s[6:7], s[0:1], 40
    s_load_dwordx2 s[8:9], s[0:1], 56
    s_nop 0
    ds_write_b32 v13, v6
    H_TAG:
    s_waitcnt vmcnt(0)
    v_readfirstlane_b32 s32, v2
    v_readfirstlane_b32 s33, v3
    s_cmp_lg_u32 s32, 0
    s_cbranch_scc1 H_TAGOK
    """)
    spin(a)
    a(f"""
    buffer_load_dwordx2 v[2:3], v11, s[12:15], 0 offen sc1
    s_branch H_TAG
    H_TAGOK:
    s_lshr_b32 s34, s16, 1
    s_and_b32 s35, s16, 1
    s_cmp_eq_u32 s34, 1
    s_waitcnt lgkmcnt(0)
    s_cselect_b32 s4, s6, s4
    s_cselect_b32 s5, s7, s5
    """)
    srd(a, 20, 4, 512 * 1024)
    srd(a, 24, 8, 2048 * 1024)
    OF, WR, ACC, WF = 64, 192, 32, 16
    a(f"""
    v_lshlrev_b32 v1, 4, v0
    s_lshl_b32 s36, s16, 13
    v_add_u32 v4, s36, v1
    s_lshl_b32 s37, s18, 18
    s_add_u32 s37, s37, s36
    s_lshl_b32 s38, s17, 15
    s_add_u32 s38, s38, s37
    s_add_u32 s39, s38, 4096
    v_add_u32 v5, s17, v0
    v_and_b32 v5, 7, v5
    v_lshlrev_b32 v5, 9, v5
    s_lshl_b32 s40, s18, 12
    s_lshl_b32 s41, s16, 7
    s_add_u32 s40, s40, s41
    s_add_u32 s40, s40, {hex(F1_OFF)}
    v_and_b32 v14, 3, v0
    v_lshlrev_b32 v14, 8, v14
    v_add_u32 v14, {REL}, v14
    v_mov_b32 v15, 1
    s_barrier
    """)
    stamp(a, 2)
    for n in range(8): a(f"ds_read_b128 {vr(OF+4*n,4)}, v4 offset:{n*1024}")
    for n in range(8):
        a(f"s_waitcnt lgkmcnt({7-n})")
        a(f"buffer_store_dwordx4 {vr(OF+4*n,4)}, v1, s[28:31], s{38+(n>>2)} offen offset:{(n&3)*1024} sc1")
    a("""
    s_waitcnt vmcnt(0)
    s_mov_b64 exec, 1
    buffer_store_dwordx2 v[2:3], v5, s[28:31], s40 offen sc1
    s_mov_b64 exec, -1
    s_mov_b32 s42, 0
    """)
    def wait_rel(n, tag):
        a(f"H_REL{tag}:")
        spin(a)
        a(f"""
        ds_read_b32 v22, v14
        s_waitcnt lgkmcnt(0)
        v_cmp_gt_u32 vcc, {n}, v22
        s_cbranch_vccz H_RELOK{tag}
        s_sleep 4
        s_branch H_REL{tag}
        H_RELOK{tag}:
        """)
    def block(b):
        if b >= 4: wait_rel(b - 3, f"B{b}")
        a(f"""
        H_FLAG{b}:
        s_bitcmp1_b32 s42, {b}
        s_cbranch_scc1 H_FLAGOK{b}
        """)
        spin(a)
        a(f"""
        s_mov_b64 exec, 0xff
        buffer_load_dwordx2 v[20:21], v5, s[28:31], s40 offen sc1
        s_waitcnt vmcnt(0)
        v_cmp_eq_u64 vcc, s[32:33], v[20:21]
        s_mov_b64 exec, -1
        s_mov_b32 s42, vcc_lo
        s_branch H_FLAG{b}
        H_FLAGOK{b}:
        s_add_u32 s43, s17, {b}
        s_and_b32 s43, s43, 7
        s_lshl_b32 s43, s43, 15
        s_add_u32 s43, s43, s37
        """)
        for hf in range(2):
            a(f"s_add_u32 m0, s36, {(b % 4) * 32768 + hf * 4096}")
            a(f"s_add_u32 s44, s43, {hf * 4096}")
            for n in range(4): a(f"buffer_load_dwordx4 v1, s[28:31], s44 offen offset:{n*1024} sc1 lds")
        a("s_waitcnt vmcnt(0)\nds_add_u32 v12, v15")
    block(1)
    stamp(a, 3)
    block(2); block(3)
    a(f"""
    s_lshl_b32 s43, s17, 3
    s_lshl_b32 s44, s16, 1
    s_add_u32 s43, s43, s44
    s_lshl_b32 s43, s43, 16
    s_lshl_b32 s44, s18, 11
    s_add_u32 s43, s43, s44
    s_add_u32 s43, s43, {hex(O_OFF)}
    s_add_u32 s44, s43, 0x10000
    v_mov_b32 v16, -1
    v_mov_b32 v17, -1
    v_mov_b32 v18, -1
    v_mov_b32 v19, -1
    buffer_store_dwordx4 v[16:19], v1, s[28:31], s43 offen sc1
    buffer_store_dwordx4 v[16:19], v1, s[28:31], s43 offen offset:1024 sc1
    buffer_store_dwordx4 v[16:19], v1, s[28:31], s44 offen sc1
    buffer_store_dwordx4 v[16:19], v1, s[28:31], s44 offen offset:1024 sc1
    """)
    block(4)
    a(f"""
    s_lshl_b32 s43, s17, 2
    s_add_u32 s44, s43, s16
    s_lshl_b32 s44, s44, 5
    s_add_u32 s44, s44, s18
    s_lshl_b32 s44, s44, 7
    s_add_u32 s44, s44, {hex(F2_OFF)}
    s_mov_b64 exec, 1
    buffer_store_dwordx2 v[2:3], v11, s[28:31], s44 offen sc1
    s_mov_b64 exec, -1
    s_add_u32 s43, s43, s19
    s_lshl_b32 s43, s43, 1
    s_add_u32 s43, s43, s34
    s_lshl_b32 s43, s43, 11
    s_add_u32 s45, s43, {hex(F2_OFF)}
    """)
    a(f"""
    v_and_b32 v6, 31, v0
    v_lshlrev_b32 v7, 2, v6
    s_lshl_b32 s43, s35, 7
    s_add_u32 s43, s43, {GP}
    v_add_u32 v7, s43, v7
    ds_read_b32 v16, v7
    ds_read_b32 v17, v7 offset:256
    ds_read_b32 v18, v7 offset:512
    ds_read_b32 v19, v7 offset:768
    s_cmp_eq_u32 s34, 0
    s_cselect_b32 s43, 1.0, -1.0
    s_cselect_b32 s44, 0, 1.0
    v_mov_b32 v20, s44
    s_waitcnt lgkmcnt(0)
    v_add_f32 v16, v16, v17
    v_add_f32 v18, v18, v19
    v_add_f32 v16, v16, v18
    v_mul_f32 v16, {hex(LOG2E | 0x80000000)}, v16
    v_exp_f32 v16, v16
    s_nop 0
    v_add_f32 v16, 1.0, v16
    v_rcp_f32 v16, v16
    s_nop 0
    v_fma_f32 v13, v16, s43, v20
    """)
    a(f"""
    v_lshrrev_b32 v7, 5, v0
    v_lshlrev_b32 v10, 10, v6
    v_lshl_add_u32 v10, v7, 6, v10
    v_lshrrev_b32 v4, 3, v0
    v_and_b32 v6, 7, v0
    v_bfe_u32 v8, v0, 4, 1
    v_lshlrev_b32 v9, 1, v8
    v_xor_b32 v6, v9, v6
    v_lshlrev_b32 v6, 4, v6
    v_lshl_add_u32 v4, v4, 10, v6
    v_bfe_u32 v6, v0, 2, 2
    v_lshl_add_u32 v7, v7, 3, v6
    v_lshlrev_b32 v7, 7, v7
    v_lshl_add_u32 v7, v8, 4, v7
    v_and_b32 v8, 1, v0
    v_lshl_add_u32 v7, v8, 6, v7
    v_bfe_u32 v8, v0, 1, 1
    v_lshl_add_u32 v7, v8, 3, v7
    v_lshrrev_b32 v6, 1, v6
    v_lshl_add_u32 v7, v6, 5, v7
    s_mul_i32 s46, s16, 6144
    s_add_u32 s46, s46, {STG}
    v_add_u32 v8, s46, v7
    v_xor_b32 v9, 32, v8
    s_lshl_b32 s47, s3, 7
    """)
    def wround(s0, n):
        for p in range(2 * n):
            a(f"s_add_u32 m0, s46, {p*1024}\ns_add_u32 s43, s47, {(2*s0+p)*8192}\nbuffer_load_dwordx4 v4, s[20:23], s43 offen lds")
        a("s_waitcnt vmcnt(0)")
        for s in range(n):
            for c in range(2):
                for e in range(2): a(f"ds_read_b64_tr_b16 {vr(WR+8*(s0+s)+4*c+2*e,2)}, v{8+c} offset:{s*2048+e*512}")
        a("s_waitcnt lgkmcnt(0)")
    wround(0, 3); wround(3, 3)
    block(5)
    wround(6, 2)
    block(6); block(7)
    stamp(a, 4)
    a(f"""
    v_lshlrev_b32 v6, 7, v0
    H_F2:
    """)
    spin(a)
    a(f"""
    s_mov_b64 exec, 0xffff
    buffer_load_dwordx2 v[16:17], v6, s[28:31], s45 offen sc1
    s_waitcnt vmcnt(0)
    v_cmp_eq_u64 vcc, s[32:33], v[16:17]
    s_mov_b64 exec, -1
    s_cmp_eq_u32 vcc_lo, 0xffff
    s_cbranch_scc0 H_F2
    s_lshl_b32 s46, s34, 14
    v_add_u32 v8, s46, v7
    v_xor_b32 v9, 32, v8
    v_add_u32 v6, 0x10000, v8
    v_add_u32 v7, 0x10000, v9
    s_lshl_b32 s43, s35, 10
    s_add_u32 s46, s46, s43
    s_lshl_b32 s43, s35, 13
    s_add_u32 s47, s47, s43
    """)
    for k in range(3):
        wait_rel(5 + k, f"W{k}")
        for p in range(8):
            a(f"s_add_u32 m0, s46, {k*32768 + p*2048}\ns_add_u32 s43, s47, {(8+8*k+p)*16384}\nbuffer_load_dwordx4 v4, s[20:23], s43 offen lds")
    a(f"""
    s_lshl_b32 s43, s17, 3
    s_lshl_b32 s44, s19, 1
    s_add_u32 s43, s43, s44
    s_add_u32 s43, s43, s35
    s_lshl_b32 s44, s43, 16
    s_lshl_b32 s45, s34, 15
    s_add_u32 s44, s44, s45
    s_add_u32 s48, s44, {hex(O_OFF)}
    """)
    for g in range(1, 8): a(f"s_add_u32 s{48+g}, s48, {g*4096}")
    a(f"""
    s_lshl_b32 s43, s43, 15
    s_lshl_b32 s44, s3, 7
    s_add_u32 s43, s43, s44
    s_lshl_b32 s44, s34, 5
    s_add_u32 s43, s43, s44
    s_lshl_b32 s44, s16, 12
    s_add_u32 s44, s44, {XCH}
    v_add_u32 v4, s44, v1
    v_xor_b32 v5, 0x2000, v4
    s_waitcnt vmcnt(0)
    """)
    stamp(a, 5)
    a("s_barrier")
    stamp(a, 6)
    def oload(g): return [f"buffer_load_dwordx4 {vr(OF+16*g+4*n,4)}, v1, s[28:31], s{48+g} offen offset:{n*1024} sc1" for n in range(4)]
    def check(g):
        f = OF + 16 * g
        L = [f"v_max3_u32 v11, v{f}, v{f+1}, v{f+2}"]
        for i in range(6): L.append(f"v_max3_u32 v11, v11, v{f+3+2*i}, v{f+4+2*i}")
        L += [f"v_max_u32 v11, v11, v{f+15}", "v_cmp_eq_u32 vcc, -1, v11"]
        return L
    def wreads(s):
        k, p = divmod(s - 8, 8)
        f = WF + 8 * (s & 1)
        return [f"ds_read_b64_tr_b16 {vr(f+4*c+2*e,2)}, v{(6 if k == 2 else 8)+c} offset:{(k&1)*32768+p*2048+e*512}" for c in range(2) for e in range(2)]
    for g in range(4):
        for x in oload(g): a(x)
    a("s_waitcnt vmcnt(12)")
    for x in check(0): a(x)
    a("s_cbranch_vccnz H_RETRY0\nH_GO0:")
    for s in range(32):
        g = s >> 2
        w = WR + 8 * s if s < 8 else WF + 8 * (s & 1)
        M = [f"v_mfma_f32_32x32x16_bf16 {vr(ACC+16*c,16)}, {vr(w+4*c,4)}, {vr(OF+4*s,4)}, {vr(ACC+16*c,16) if s else 0}" for c in range(2)]
        if s >= 8: a("s_waitcnt lgkmcnt(0)")
        a(M[0])
        if 7 <= s < 31:
            for x in wreads(s + 1): a(x)
        if g < 4 and s % 4 < 2:
            for x in oload(g + 4)[2 * (s % 4):2 * (s % 4) + 2]: a(x)
        if s % 4 == 3 and g < 7:
            a(f"s_waitcnt vmcnt({min(12, 4 * (6 - g))})")
            for x in check(g + 1)[:5]: a(x)
        a(M[1])
        if s % 4 == 3 and g < 7:
            for x in check(g + 1)[5:]: a(x)
            a(f"s_cbranch_vccnz H_RETRY{g+1}\nH_GO{g+1}:")
    a("s_cmp_eq_u32 s34, 0\ns_cbranch_scc1 H_B0\ns_nop 8")
    def xchg(keep):
        give = ACC + 16 * (1 - keep); kp = ACC + 16 * keep
        for i in range(4):
            for r in range(0, 4, 2): a(f"v_pk_mul_f32 {vr(give+4*i+r,2)}, {vr(give+4*i+r,2)}, v[12:13] op_sel:[0,1]")
            a(f"ds_write_b128 v4, {vr(give+4*i,4)} offset:{i*1024}")
        a("s_waitcnt lgkmcnt(0)\ns_barrier")
        for i in range(4): a(f"ds_read_b128 {vr(OF+4*i,4)}, v5 offset:{i*1024}")
        for i in range(4):
            a(f"s_waitcnt lgkmcnt({3-i})")
            for r in range(0, 4, 2): a(f"v_pk_fma_f32 {vr(kp+4*i+r,2)}, {vr(kp+4*i+r,2)}, v[12:13], {vr(OF+4*i+r,2)} op_sel:[0,1,0]")
            for r in range(2): a(f"v_cvt_pk_bf16_f32 v{WF+2*i+r}, v{kp+4*i+2*r}, v{kp+4*i+2*r+1}")
    xchg(1)
    a("s_branch H_ST\nH_B0:\ns_nop 9")
    xchg(0)
    a(f"""
    H_ST:
    buffer_store_dwordx4 {vr(WF,4)}, v10, s[24:27], s43 offen
    buffer_store_dwordx4 {vr(WF+4,4)}, v10, s[24:27], s43 offen offset:16
    """)
    if STAMPS: a("s_add_u32 s16, s16, 4")
    stamp_flush(a)
    a("s_endpgm")
    for g in range(8):
        a(f"H_RETRY{g}:")
        spin(a)
        for gg in range(g, min(g + 4, 8)):
            for x in oload(gg): a(x)
        a("s_waitcnt vmcnt(0)")
        for x in check(g): a(x)
        a(f"s_cbranch_vccnz H_RETRY{g}\ns_branch H_GO{g}")

def main(out):
    ref = open(f"cdna_kernels/{NAME}.s.ref").read().split("\n")
    hdr = [l for l in ref if l.startswith(";") and "@launch" not in l and "Override launch" not in l and "grid=ceil" not in l]
    lab = NAME + "_kernel"
    a = Asm()
    a(f".globl {lab}\n.p2align 8\n.type {lab},@function\n{lab}:")
    prologue(a); compute_phase1(a); attention(a); helper(a)
    desc = f""".p2align 6
.amdhsa_kernel {lab}
  .amdhsa_next_free_vgpr 256
  .amdhsa_next_free_sgpr 102
  .amdhsa_accum_offset 256
  .amdhsa_group_segment_fixed_size 0
  .amdhsa_kernarg_size 80
  .amdhsa_user_sgpr_count 2
  .amdhsa_user_sgpr_kernarg_segment_ptr 1
  .amdhsa_system_sgpr_workgroup_id_x 1
.end_amdhsa_kernel
"""
    s = "\n".join(hdr + ["; @launch grid=(256,1,1) block=(512,1,1) lds=163840"]) + '\n.amdgcn_target "amdgcn-amd-amdhsa--gfx950"\n.text\n' + a.text()
    s += '.section .rodata,"a"\n' + desc
    open(out, "w").write(s)

if __name__ == "__main__":
    args = [x for x in sys.argv[1:] if not x.startswith("--")]
    main(args[0] if args else f"cdna_kernels/{NAME}.s")
```

```python
import sys
NAME = "gated_mix__softmax_full_mha__softmax_full_mha__prompt"
O_OFF, F1_OFF, F2_OFF = 8 << 20, 12 << 20, (12 << 20) + (128 << 10)
WS_BYTES = 13 << 20
QSCALE = 0x3EB8AA3B
LOG2E = 0x3FB8AA3B
SLOT = 45056
QX, STG, GP, LANDED, REL, XCH = 135168, 131072, 155648, 156672, 157696, 131072
OPT = {x[2:].split("=")[0]: (x.split("=")[1] if "=" in x else True) for x in sys.argv[1:] if x.startswith("--")}
STAMPS = "stamps" in OPT
STAMP_OFF = 20 << 20
SREG = [96, 84, 86, 88, 90, 92, 94, 98]

class Asm:
    def __init__(self): self.L = []
    def __call__(self, s):
        for x in s.strip("\n").split("\n"):
            x = x.strip()
            if not x: continue
            self.L.append(x if x.endswith(":") or x.startswith(".") else "    " + x)
    def text(self): return "\n".join(self.L) + "\n"

def vr(a, n): return f"v[{a}:{a+n-1}]"
def srd(a, d, lo, nbytes):
    a(f"s_mov_b32 s{d}, s{lo}\ns_mov_b32 s{d+1}, s{lo+1}\ns_mov_b32 s{d+2}, {hex(nbytes)}\ns_mov_b32 s{d+3}, 0x00020000")
SETS = {True: ("aB0 aMF aST aEND cST cEND", "hB0 hP1 hBL1 hBL7 hBBw hBB"),
        "p1": ("aB0 aB2 aB4 aB6 aB7 aMF", "hB0 hB1 hB3 hB5 hB7 hP1"),
        "ho": ("aMF aP1 aST anSPIN cST cEND", "hP1 hST hFL hPOLL1 hBL1 hBL2"),
        "tail": ("aEND aCHK aSTO aBB aX anSPIN", "hBB hG0 hG7 hMF hXC hnSPIN")}
def stamp(a, name):
    if not STAMPS: return
    if name in (0, 7): slot = name
    else:
        names = [x.split() for x in SETS[OPT["stamps"]]]
        names = names[1] if name[0] == "h" else names[0]
        if name not in names: return
        slot = names.index(name) + 1
    if str(name)[1:] == "nSPIN":
        a(f"s_sub_u32 s{SREG[slot]}, 0x100000, s101"); return
    if str(name)[1:] == "zSPIN": return
    a(f"{'s_memtime' if str(name)[0] == 'c' else 's_memrealtime'} s[{SREG[slot]}:{SREG[slot]+1}]")
def stamp_flush(a):
    if not STAMPS: return
    a("s_waitcnt vmcnt(0)")
    stamp(a, 7)
    a(f"""
    s_load_dwordx2 s[80:81], s[0:1], 72
    s_waitcnt lgkmcnt(0)
    s_mov_b32 s82, {hex(STAMP_OFF + (1 << 20))}
    s_mov_b32 s83, 0x00020000
    s_mov_b64 exec, 1
    s_lshl_b32 s78, s2, 4
    s_add_u32 s78, s78, s16
    s_lshl_b32 s79, s78, 5
    s_add_u32 s79, s79, {hex(STAMP_OFF)}
    v_mov_b32 v8, 0
    """)
    for i in range(8): a(f"v_mov_b32 v{16+i}, s{SREG[i]}")
    a("""
    buffer_store_dwordx4 v[16:19], v8, s[80:83], s79 offen
    buffer_store_dwordx4 v[20:23], v8, s[80:83], s79 offen offset:16
    s_waitcnt vmcnt(0)
    """)

SB, OA, QF, KF, VF = 16, 80, 144, 160, 168
RC = 192
POS = (2, 7, 11)
def spin(a):
    a("s_sub_u32 s101, s101, 1\ns_cbranch_scc1 K_END")

def prologue(a):
    a("""
    s_cmp_ge_u32 s2, 256
    s_cbranch_scc1 K_END
    """)
    stamp(a, 0)
    a("""
    s_load_dwordx4 s[4:7], s[0:1], 0
    s_load_dwordx2 s[8:9], s[0:1], 32
    s_load_dwordx2 s[10:11], s[0:1], 48
    s_load_dwordx4 s[12:15], s[0:1], 64
    v_lshrrev_b32 v1, 6, v0
    v_and_b32 v0, 63, v0
    v_readfirstlane_b32 s16, v1
    s_and_b32 s19, s2, 7
    s_lshr_b32 s3, s2, 3
    s_and_b32 s17, s19, 1
    s_lshl_b32 s17, s17, 2
    s_and_b32 s18, s3, 3
    s_add_u32 s17, s17, s18
    s_lshr_b32 s3, s3, 2
    s_lshr_b32 s19, s19, 1
    s_lshl_b32 s18, s19, 3
    s_add_u32 s18, s18, s3
    s_cmp_ge_u32 s18, 16
    s_waitcnt lgkmcnt(0)
    s_cselect_b32 s6, s8, s6
    s_cselect_b32 s7, s9, s7
    """)
    srd(a, 28, 14, WS_BYTES)
    a("s_mov_b32 s101, 0x100000")
    a("s_cmp_ge_u32 s16, 4\ns_cbranch_scc1 HELPER")

def compute_phase1(a):
    ACC = [QF, SB, 184, 200, 216, 232]
    FR = [32, 52]
    XA = 248
    a("""
    s_or_b32 s32, s2, s16
    s_cmp_lg_u32 s32, 0
    s_cbranch_scc1 C_NOTAG
    s_memrealtime s[32:33]
    s_mov_b32 s14, 256
    s_mov_b32 s15, 0x00020000
    v_mov_b32 v1, 0
    s_waitcnt lgkmcnt(0)
    s_or_b32 s32, s32, 1
    v_mov_b32 v2, s32
    v_mov_b32 v3, s33
    s_mov_b64 exec, 1
    buffer_store_dwordx2 v[2:3], v1, s[12:15], 0 offen sc1
    s_mov_b64 exec, -1
    C_NOTAG:
    """)
    a(f"""
    s_and_b32 s33, s16, 1
    v_and_b32 v5, 31, v0
    v_lshrrev_b32 v6, 5, v0
    v_bfe_u32 v7, v0, 1, 3
    v_lshlrev_b32 v9, 7, v5
    s_lshl_b32 s34, s16, 13
    v_add_u32 v9, s34, v9
    """)
    for s in range(4):
        a(f"v_add_u32 v10, {2*s}, v6\nv_xor_b32 v10, v10, v7\nv_lshl_add_u32 v{XA+s}, v10, 4, v9\nv_add_u32 v{XA+4+s}, {2*SLOT}, v{XA+s}")
    a(f"""
    v_bfe_u32 v9, v0, 2, 2
    v_lshl_add_u32 v9, v6, 3, v9
    v_lshlrev_b32 v9, 6, v9
    v_and_b32 v10, 3, v0
    v_lshl_add_u32 v9, v10, 3, v9
    v_bfe_u32 v10, v0, 4, 1
    v_lshl_add_u32 v1, v10, 5, v9
    v_add_u32 v1, 0x8000, v1
    v_add_u32 v2, {2*SLOT}, v1
    s_lshl_b32 s35, s33, 5
    v_xor_b32 v3, s35, v1
    v_add_u32 v4, {2*SLOT}, v3
    """)
    a(f"""
    s_lshl_b32 s35, s16, 8
    s_add_u32 s35, s35, {REL}
    v_lshlrev_b32 v13, 2, v0
    v_add_u32 v13, s35, v13
    v_mov_b32 v14, 0
    ds_write_b32 v13, v14
    v_and_b32 v11, 3, v0
    v_lshlrev_b32 v11, 8, v11
    v_add_u32 v11, {LANDED}, v11
    v_mov_b32 v8, 0xdddddddd
    v_and_b32 v9, 27, v5
    v_mov_b32 v10, 0x3f803f80
    v_cmp_eq_u32 vcc, 16, v9
    s_mov_b32 s36, 0x0000ffff
    s_mov_b32 s37, 0x0000ffff
    v_cndmask_b32 v12, 0, v10, vcc
    v_mov_b32 v14, 1
    v_lshlrev_b32 v15, 4, v0
    v_and_b32 v9, 0x33, v0
    v_bfe_u32 v10, v0, 2, 1
    v_lshl_or_b32 v9, v10, 3, v9
    v_bfe_u32 v10, v0, 3, 1
    v_lshl_or_b32 v9, v10, 2, v9
    v_lshlrev_b32 v9, 4, v9
    s_lshl_b32 s35, s33, 11
    v_add_u32 v10, s35, v9
    v_mov_b32 v9, v10
    """)
    for r in range(VF, VF + 16): a(f"v_mov_b32 v{r}, v12")
    for r in range(OA, OA + 64): a(f"v_mov_b32 v{r}, 0")
    for r in range(SB + 56, SB + 64): a(f"v_mov_b32 v{r}, 0")
    a(f"""
    v_and_b32 v7, 15, v0
    v_lshlrev_b32 v7, 4, v7
    v_lshl_add_u32 v7, v6, 9, v7
    v_bfe_u32 v6, v0, 4, 1
    v_lshl_add_u32 v6, v6, 11, v7
    v_add_u32 v6, s34, v6
    v_add_u32 v5, s34, v15
    s_lshl_b32 s35, s16, 11
    s_add_u32 s35, s35, {QX}
    v_add_u32 v7, s35, v15
    """)
    def reads(c, s, buf):
        f = FR[buf]; slot = c % 3
        hi = slot == 2
        so = 0 if hi else slot * SLOT
        xr = XA + s + (4 if hi else 0)
        w = 2 if hi else 1; wq = 4 if hi else 3
        wo = so + s * 1024
        R = [f"ds_read_b128 {vr(f,4)}, v{xr} offset:{so}"]
        R += [f"ds_read_b64_tr_b16 {vr(f+12+2*e,2)}, v{w} offset:{wo+4096+e*256}" for e in range(2)]
        R += [f"ds_read_b128 {vr(f+4,4)}, v{xr} offset:{so+4096}"]
        R += [f"ds_read_b64_tr_b16 {vr(f+16+2*e,2)}, v{w} offset:{wo+8192+e*256}" for e in range(2)]
        R += [f"ds_read_b64_tr_b16 {vr(f+8+2*e,2)}, v{wq} offset:{wo+e*256}" for e in range(2)]
        return R
    a("s_waitcnt lgkmcnt(0)\ns_barrier")
    stamp(a, "aB0")
    for r in reads(0, 0, 0): a(r)
    for n in range(32):
        c, s = divmod(n, 4)
        f = FR[n & 1]
        M = []
        for part in (1, 2, 0):
            for b in range(2):
                d = ACC[2 * part + b]
                x = vr(f + 4 * b, 4); w = vr(f + 8 + 4 * part, 4)
                A, B = (w, x) if part < 2 else (x, w)
                M.append(f"v_mfma_f32_32x32x16_bf16 {vr(d,16)}, {A}, {B}, {vr(d,16) if n else 0}")
        R = reads(*divmod(n + 1, 4), (n + 1) & 1) if n < 31 else []
        a("s_waitcnt lgkmcnt(0)")
        a(M[0])
        if s == 3 and n < 31:
            a("s_barrier"); stamp(a, f"aB{c+1}")
        grp = [R[0:3], R[3:6], R[6:8], [], []]
        for i in range(5):
            for r in grp[i]: a(r)
            a(M[i + 1])
    stamp(a, "aMF")
    a(f"s_mov_b32 s40, {hex(QSCALE)}\ns_mov_b32 s41, s40\ns_nop 5")
    for b in range(2):
        d = ACC[2 + b]
        for hd in range(2):
            for i in range(4): a(f"v_cvt_pk_bf16_f32 v{d+8*hd+i}, v{d+8*hd+2*i}, v{d+8*hd+2*i+1}")
            a(f"ds_write_b128 v5, {vr(d+8*hd,4)} offset:{b*4096 + hd*2048}")
    for b in range(2):
        d = ACC[4 + b]
        for m in range(2):
            for i in range(4): a(f"v_cvt_pk_bf16_f32 v{d+8*m+i}, v{d+8*m+2*i}, v{d+8*m+2*i+1}")
            a(f"ds_write_b128 v6, {vr(d+8*m,4)} offset:{b*4096 + 1024 + m*256}")
    for b in range(2):
        d = ACC[b]
        for r in range(8, 16, 2): a(f"v_pk_mul_f32 {vr(d+r,2)}, {vr(d+r,2)}, s[40:41]")
        for i in range(4): a(f"v_cvt_pk_bf16_f32 v{KF+4*b+i}, v{d+8+2*i}, v{d+8+2*i+1}")
        a(f"ds_write_b128 v7, {vr(KF+4*b,4)} offset:{b*1024}")
    for b in range(2):
        d = ACC[b]
        for r in range(0, 8, 2): a(f"v_pk_mul_f32 {vr(d+r,2)}, {vr(d+r,2)}, s[40:41]")
        for i in range(4): a(f"v_cvt_pk_bf16_f32 v{QF+4*b+i}, v{d+2*i}, v{d+2*i+1}")
    a(f"""
    v_xor_b32 v7, 0x800, v7
    s_waitcnt lgkmcnt(0)
    s_barrier
    """)
    stamp(a, "aP1")

def attention(a):
    a(f"""
    ds_read_b128 {vr(KF,4)}, v9
    ds_read_b128 {vr(QF+8,4)}, v7
    ds_read_b128 {vr(QF+12,4)}, v7 offset:1024
    s_mov_b64 exec, s[36:37]
    ds_read_b128 {vr(VF,4)}, v9 offset:1024
    ds_read_b128 {vr(VF+4,4)}, v9 offset:1280
    s_mov_b64 exec, -1
    s_mov_b32 s38, 0
    s_mov_b32 s39, 1
    s_mov_b32 s40, 8
    s_waitcnt lgkmcnt(4)
    """)
    for q in range(2):
        a(f"v_mfma_f32_32x32x16_bf16 {vr(SB+16*q,16)}, {vr(KF,4)}, {vr(QF+4*q,4)}, 0")
    a("s_waitcnt lgkmcnt(0)\ns_nop 10")
    stamp(a, "aST"); stamp(a, "cST")
    a(".p2align 6\nA_LOOP:")
    for j in range(8):
        kb = KF + 4 * (j & 1); kbn = KF + 4 * ((j + 1) & 1)
        vb = VF + 8 * (j & 1); vbn = VF + 8 * ((j + 1) & 1)
        o = ((j + 1) % 8) * 4096
        post = {(0, 0): ["s_mov_b64 exec, s[36:37]", f"ds_read_b128 {vr(vbn,4)}, v9 offset:{o+1024}",
                         f"ds_read_b128 {vr(vbn+4,4)}, v9 offset:{o+1280}", "s_mov_b64 exec, -1"],
                (0, 2): [f"ds_read_b128 {vr(kbn,4)}, v9 offset:{o}"],
                (2, 0): ["s_waitcnt lgkmcnt(0)"]}
        if j == 6:
            post[(1, 0)] = ["ds_read_b32 v12, v11", "s_add_u32 s38, s38, 0x8000", "s_and_b32 s38, s38, 0x1ffff"]
            post[(2, 2)] = ["ds_add_u32 v13, v14"]
            post[(3, 0)] = ["v_add_u32 v9, s38, v10"]
            post[(3, 1)] = ["v_cmp_gt_u32 vcc, s39, v12"]
            post[(3, 2)] = ["s_cbranch_vccnz A_WAIT", "A_BACK:"]
        if j == 7:
            post[(1, 0)] = ["s_add_u32 s39, s39, 1", "s_min_u32 s39, s39, 7"]
            post[(1, 2)] = ["s_sub_u32 s40, s40, 1", "s_cmp_lg_u32 s40, 0"]
        for q in range(4):
            n = 4 * j + q
            cur = SB + 16 * (n % 4); prev = SB + 16 * ((n - 1) % 4); nxt = SB + 16 * ((n + 2) % 4)
            oprev = OA + 16 * ((q - 1) % 4); ocur = OA + 16 * q
            vprev = (vbn if q == 0 else vb) + 4
            q2 = (q + 2) % 4; k2 = kb if q < 2 else kbn
            M = [f"v_smfmac_f32_32x32x32_bf16 {vr(oprev,16)}, {vr(vprev,4)}, {vr(prev+8,8)}, v8",
                 f"v_mfma_f32_32x32x16_bf16 {vr(nxt,16)}, {vr(k2,4)}, {vr(QF+4*q2,4)}, 0",
                 f"v_smfmac_f32_32x32x32_bf16 {vr(ocur,16)}, {vr(vb,4)}, {vr(cur,8)}, v8"]
            for e in range(16):
                for m in range(3):
                    if e == POS[m]:
                        a(M[m])
                        for x in post.get((q, m), []): a(x)
                a(f"v_exp_f32 v{cur+e}, v{cur+e}")
    a(f"""
    s_cbranch_scc1 A_LOOP
    s_nop 0
    v_smfmac_f32_32x32x32_bf16 {vr(OA+48,16)}, {vr(VF+12,4)}, {vr(SB+56,8)}, v8
    """)
    stamp(a, "aEND"); stamp(a, "cEND")
    a(f"""
    s_lshl_b32 s42, s17, 3
    s_lshl_b32 s43, s16, 1
    s_add_u32 s42, s42, s43
    s_lshl_b32 s42, s42, 16
    s_lshl_b32 s43, s18, 1
    s_add_u32 s43, s43, s33
    s_lshl_b32 s43, s43, 10
    s_add_u32 s42, s42, s43
    s_add_u32 s42, s42, {hex(O_OFF)}
    s_add_u32 s43, s42, 0x10000
    s_xor_b32 s44, s42, 0x20000
    s_xor_b32 s45, s43, 0x20000
    s_mov_b32 s46, 0x17800000
    s_mov_b32 s47, 0x67800000
    v_mov_b32 v2, 0
    v_mov_b32 v3, 0
    v_min3_f32 v4, v{OA+8}, v{OA+24}, v{OA+40}
    v_max3_f32 v5, v{OA+8}, v{OA+24}, v{OA+40}
    """)
    for q in range(4):
        for r in range(0, 8, 2): a(f"v_pk_fma_f32 v[2:3], {vr(OA+16*q+r,2)}, 0, v[2:3]")
    a(f"""
    v_min_f32 v4, v4, v{OA+56}
    v_max_f32 v5, v5, v{OA+56}
    v_add_f32 v2, v2, v3
    v_cmp_lt_f32 s[48:49], s46, v4
    v_cmp_gt_f32 s[50:51], s47, v5
    v_cmp_eq_f32 vcc, 0, v2
    """)
    for q in range(4): a(f"v_rcp_f32 v{RC+2*q}, v{OA+16*q+8}")
    a("""
    s_and_b64 s[48:49], s[48:49], s[50:51]
    s_and_b64 s[48:49], s[48:49], vcc
    s_cmp_eq_u64 s[48:49], -1
    s_cbranch_scc0 A_SLOW
    """)
    stamp(a, "aCHK")
    def norm(q, clamp):
        for r in range(0, 8, 2):
            a(f"v_pk_mul_f32 {vr(OA+16*q+r,2)}, {vr(OA+16*q+r,2)}, {vr(RC+2*q,2)} op_sel_hi:[1,0]")
        for i in range(4): a(f"v_cvt_pk_bf16_f32 v{SB+4*q+i}, v{OA+16*q+2*i}, v{OA+16*q+2*i+1}")
        if clamp:
            for i in range(4): a(f"v_min_u32 v{SB+4*q+i}, -2, v{SB+4*q+i}")
        a(f"buffer_store_dwordx4 {vr(SB+4*q,4)}, v15, s[28:31], s{42+q} offen sc1")
    for q in range(4): norm(q, False)
    a("A_DONE:")
    if "drain" in OPT: a("s_waitcnt vmcnt(0)")
    stamp(a, "aSTO")
    a("s_barrier")
    stamp(a, "aBB")
    a("s_barrier")
    stamp(a, "aX"); stamp(a, "anSPIN")
    stamp_flush(a)
    a("K_END:\ns_endpgm")
    a("A_WAIT:")
    spin(a)
    a("""
    ds_read_b32 v12, v11
    s_waitcnt lgkmcnt(0)
    v_cmp_gt_u32 vcc, s39, v12
    s_cbranch_vccnz A_WAIT
    s_branch A_BACK
    """)
    a(f"""
    A_SLOW:
    s_lshl_b32 s38, s18, 18
    s_mov_b32 s40, 64
    """)
    for q in range(4): a(f"v_mov_b32 v{184+q}, 0xff800000")
    a(f"""
    A_MAXLOOP:
    buffer_load_dwordx4 {vr(KF,4)}, v10, s[28:31], s38 offen sc1
    s_add_u32 s38, s38, 4096
    s_waitcnt vmcnt(0)
    """)
    for q in range(4): a(f"v_mfma_f32_32x32x16_bf16 {vr(SB+16*q,16)}, {vr(KF,4)}, {vr(QF+4*q,4)}, 0")
    a("s_nop 11")
    for q in range(4):
        for i in range(8): a(f"v_max3_f32 v{184+q}, v{184+q}, v{SB+16*q+2*i}, v{SB+16*q+2*i+1}")
    a("s_sub_u32 s40, s40, 1\ns_cmp_lg_u32 s40, 0\ns_cbranch_scc1 A_MAXLOOP")
    for q in range(4): a(f"v_mov_b32 v{188+q}, v{184+q}")
    a("s_nop 1")
    for q in range(4): a(f"v_permlane32_swap_b32 v{184+q}, v{188+q}")
    a("s_nop 1")
    for q in range(4): a(f"v_max_f32 v{184+q}, v{184+q}, v{188+q}")
    for r in range(OA, OA + 64): a(f"v_mov_b32 v{r}, 0")
    a(f"""
    s_lshl_b32 s38, s18, 18
    s_mov_b32 s40, 64
    A_EXPLOOP:
    buffer_load_dwordx4 {vr(KF,4)}, v10, s[28:31], s38 offen sc1
    s_mov_b64 exec, s[36:37]
    buffer_load_dwordx4 {vr(VF,4)}, v10, s[28:31], s38 offen offset:1024 sc1
    buffer_load_dwordx4 {vr(VF+4,4)}, v10, s[28:31], s38 offen offset:1280 sc1
    s_mov_b64 exec, -1
    s_add_u32 s38, s38, 4096
    s_waitcnt vmcnt(0)
    """)
    for q in range(4): a(f"v_mfma_f32_32x32x16_bf16 {vr(SB+16*q,16)}, {vr(KF,4)}, {vr(QF+4*q,4)}, 0")
    a("s_nop 11")
    for q in range(4):
        for e in range(16): a(f"v_sub_f32 v{SB+16*q+e}, v{SB+16*q+e}, v{184+q}")
        for e in range(16): a(f"v_exp_f32 v{SB+16*q+e}, v{SB+16*q+e}")
        a("s_nop 1")
        a(f"v_smfmac_f32_32x32x32_bf16 {vr(OA+16*q,16)}, {vr(VF,4)}, {vr(SB+16*q,8)}, v8")
        a(f"v_smfmac_f32_32x32x32_bf16 {vr(OA+16*q,16)}, {vr(VF+4,4)}, {vr(SB+16*q+8,8)}, v8")
    a("s_sub_u32 s40, s40, 1\ns_cmp_lg_u32 s40, 0\ns_cbranch_scc1 A_EXPLOOP\ns_nop 11")
    for q in range(4): a(f"v_rcp_f32 v{RC+2*q}, v{OA+16*q+8}")
    a("s_nop 0")
    for q in range(4): norm(q, True)
    a("s_branch A_DONE")

def helper(a):
    GW = 128
    a("""
    HELPER:
    s_sub_u32 s16, s16, 4
    s_lshl_b32 s8, s16, 5
    s_add_u32 s10, s10, s8
    s_addc_u32 s11, s11, 0
    """)
    stamp(a, "hARG")
    ROT = int(OPT.get("rot", 0))
    a(f"""
    s_lshr_b32 s9, s2, 3
    s_and_b32 s9, s9, 3
    s_lshl_b32 s9, s9, 1
    s_add_u32 s9, s9, s3
    s_and_b32 s9, s9, {ROT}
    """)
    for c in range(8):
        if ROT: a(f"s_add_u32 s8, s9, {c}\ns_and_b32 s8, s8, 7\ns_lshl_b32 s8, s8, 7\ns_load_dwordx8 s[{32+8*c}:{39+8*c}], s[10:11], s8")
        else: a(f"s_load_dwordx8 s[{32+8*c}:{39+8*c}], s[10:11], {c*128}")
    srd(a, 20, 4, 2048 * 1024)
    srd(a, 24, 6, 512 * 3072)
    a("""
    s_mov_b32 s14, 256
    s_mov_b32 s15, 0x00020000
    v_lshrrev_b32 v1, 3, v0
    v_and_b32 v2, 7, v0
    v_lshrrev_b32 v3, 4, v0
    s_and_b32 s4, s16, 1
    s_lshl_b32 s4, s4, 2
    v_add_u32 v4, s4, v3
    v_xor_b32 v4, v4, v2
    v_lshlrev_b32 v4, 4, v4
    v_lshl_add_u32 v4, v1, 10, v4
    v_lshrrev_b32 v1, 2, v0
    v_mul_u32_u24 v5, 3072, v1
    v_and_b32 v2, 3, v0
    v_lshl_add_u32 v5, v2, 4, v5
    s_lshl_b32 s4, s17, 18
    s_lshl_b32 s5, s16, 13
    s_add_u32 s4, s4, s5
    s_mul_i32 s5, s16, 49152
    s_and_b32 s6, s18, 15
    s_lshl_b32 s6, s6, 6
    s_add_u32 s5, s5, s6
    s_lshl_b32 s6, s16, 10
    """)
    def chunk(c):
        so = (c % 3) * SLOT
        a(f"s_add_u32 s8, s9, {c}\ns_and_b32 s8, s8, 7\ns_mul_i32 s10, s8, {64*3072}\ns_add_u32 s10, s10, s5\ns_lshl_b32 s8, s8, 7\ns_add_u32 s8, s8, s4")
        for i in range(8):
            if i < 3:
                part = (1, 2, 0)[i]
                a(f"s_add_u32 m0, s6, {so + 32768 + part*4096}")
                a(f"s_add_u32 s7, s10, {part*1024}")
                a("buffer_load_dwordx4 v5, s[24:27], s7 offen lds")
            a(f"s_add_u32 m0, s6, {so + i*4096}")
            a(f"s_add_u32 s7, s8, {i*32768}")
            a("buffer_load_dwordx4 v4, s[20:23], s7 offen lds")
    EARLY = "late0" not in OPT
    for c in range(2 if EARLY else 3):
        chunk(c); stamp(a, f"hC{c}")
    a(f"""
    s_lshl_b32 s7, s16, 8
    s_add_u32 s8, s7, {LANDED}
    v_lshlrev_b32 v13, 2, v0
    v_add_u32 v12, s8, v13
    v_mov_b32 v6, 0
    ds_write_b32 v12, v6
    s_add_u32 s8, s7, {GP}
    v_add_u32 v13, s8, v13
    v_bfe_u32 v1, v0, 1, 3
    s_lshl_b32 s8, s16, 1
    v_xor_b32 v1, s8, v1
    v_lshlrev_b32 v1, 4, v1
    v_lshl_add_u32 v1, v0, 7, v1
    s_lshl_b32 s8, s19, 13
    v_add_u32 v7, s8, v1
    v_xor_b32 v8, 16, v7
    v_add_u32 v9, {2*SLOT}, v7
    v_add_u32 v10, {2*SLOT}, v8
    v_mov_b32 v11, 0
    s_waitcnt lgkmcnt(0)
    """)
    for i in range(64): a(f"v_mov_b32 v{GW+i}, s{32+i}")
    def gate(c):
        hi = c % 3 == 2
        so = 0 if hi else (c % 3) * SLOT
        a(f"ds_read_b128 v[16:19], v{9 if hi else 7} offset:{so}\nds_read_b128 v[20:23], v{10 if hi else 8} offset:{so}")
        a("s_waitcnt lgkmcnt(0)")
        for i in range(8): a(f"v_dot2_f32_bf16 v6, v{16+i}, v{GW+8*c+i}, v6")
    a(f"s_waitcnt vmcnt({11 if EARLY else 22})\ns_barrier")
    stamp(a, "hB0")
    for c in range(7):
        if (0 if EARLY else 1) <= c <= 5: chunk(c + 2)
        if c == 5: a("buffer_load_dwordx2 v[2:3], v11, s[12:15], 0 offen sc1")
        gate(c)
        a(f"s_waitcnt vmcnt({11 if c < 5 else 12 if c == 5 else 1})\ns_barrier")
        stamp(a, f"hB{c+1}")
    gate(7)
    a(f"""
    s_load_dwordx2 s[4:5], s[0:1], 16
    s_load_dwordx2 s[6:7], s[0:1], 40
    s_load_dwordx2 s[8:9], s[0:1], 56
    s_nop 0
    ds_write_b32 v13, v6
    H_TAG:
    s_waitcnt vmcnt(0)
    v_readfirstlane_b32 s32, v2
    v_readfirstlane_b32 s33, v3
    s_cmp_lg_u32 s32, 0
    s_cbranch_scc1 H_TAGOK
    """)
    spin(a)
    a(f"""
    buffer_load_dwordx2 v[2:3], v11, s[12:15], 0 offen sc1
    s_branch H_TAG
    H_TAGOK:
    s_lshr_b32 s34, s16, 1
    s_and_b32 s35, s16, 1
    s_cmp_eq_u32 s34, 1
    s_waitcnt lgkmcnt(0)
    s_cselect_b32 s4, s6, s4
    s_cselect_b32 s5, s7, s5
    """)
    srd(a, 20, 4, 512 * 1024)
    srd(a, 24, 8, 2048 * 1024)
    OF, WR, ACC, WF = 64, 192, 32, 16
    a(f"""
    v_lshlrev_b32 v1, 4, v0
    s_lshl_b32 s36, s16, 13
    v_add_u32 v4, s36, v1
    s_lshl_b32 s37, s18, 18
    s_add_u32 s37, s37, s36
    s_lshl_b32 s38, s17, 15
    s_add_u32 s38, s38, s37
    s_add_u32 s39, s38, 4096
    v_add_u32 v5, s17, v0
    v_and_b32 v5, 7, v5
    v_lshlrev_b32 v5, 9, v5
    s_lshl_b32 s40, s18, 12
    s_lshl_b32 s41, s16, 7
    s_add_u32 s40, s40, s41
    s_add_u32 s40, s40, {hex(F1_OFF)}
    v_and_b32 v14, 3, v0
    v_lshlrev_b32 v14, 8, v14
    v_add_u32 v14, {REL}, v14
    v_mov_b32 v15, 1
    s_barrier
    """)
    stamp(a, "hP1")
    for n in range(8): a(f"ds_read_b128 {vr(OF+4*n,4)}, v4 offset:{n*1024}")
    for n in range(8):
        a(f"s_waitcnt lgkmcnt({7-n})")
        a(f"buffer_store_dwordx4 {vr(OF+4*n,4)}, v1, s[28:31], s{38+(n>>2)} offen offset:{(n&3)*1024} sc1")
    stamp(a, "hST")
    a("""
    s_waitcnt vmcnt(0)
    s_mov_b64 exec, 1
    buffer_store_dwordx2 v[2:3], v5, s[28:31], s40 offen sc1
    s_mov_b64 exec, -1
    s_mov_b32 s42, 0
    """)
    stamp(a, "hFL")
    def wait_rel(n, tag):
        a(f"H_REL{tag}:")
        spin(a)
        a(f"""
        ds_read_b32 v22, v14
        s_waitcnt lgkmcnt(0)
        v_cmp_gt_u32 vcc, {n}, v22
        s_cbranch_vccz H_RELOK{tag}
        s_sleep 4
        s_branch H_REL{tag}
        H_RELOK{tag}:
        """)
    def block(b):
        if b >= 4: wait_rel(b - 3, f"B{b}")
        a(f"""
        H_FLAG{b}:
        s_bitcmp1_b32 s42, {b}
        s_cbranch_scc1 H_FLAGOK{b}
        """)
        spin(a)
        a(f"""
        s_mov_b64 exec, 0xff
        buffer_load_dwordx2 v[20:21], v5, s[28:31], s40 offen sc1
        s_waitcnt vmcnt(0)
        v_cmp_eq_u64 vcc, s[32:33], v[20:21]
        s_mov_b64 exec, -1
        s_mov_b32 s42, vcc_lo
        s_branch H_FLAG{b}
        H_FLAGOK{b}:
        s_add_u32 s43, s17, {b}
        s_and_b32 s43, s43, 7
        s_lshl_b32 s43, s43, 15
        s_add_u32 s43, s43, s37
        """)
        stamp(a, f"hPOLL{b}")
        for hf in range(2):
            a(f"s_add_u32 m0, s36, {(b % 4) * 32768 + hf * 4096}")
            a(f"s_add_u32 s44, s43, {hf * 4096}")
            for n in range(4): a(f"buffer_load_dwordx4 v1, s[28:31], s44 offen offset:{n*1024} sc1 lds")
        a("s_waitcnt vmcnt(0)\nds_add_u32 v12, v15")
        stamp(a, f"hBL{b}")
    block(1)
    block(2); block(3)
    a(f"""
    s_lshl_b32 s43, s17, 3
    s_lshl_b32 s44, s16, 1
    s_add_u32 s43, s43, s44
    s_lshl_b32 s43, s43, 16
    s_lshl_b32 s44, s18, 11
    s_add_u32 s43, s43, s44
    s_add_u32 s43, s43, {hex(O_OFF)}
    s_add_u32 s44, s43, 0x10000
    v_mov_b32 v16, -1
    v_mov_b32 v17, -1
    v_mov_b32 v18, -1
    v_mov_b32 v19, -1
    buffer_store_dwordx4 v[16:19], v1, s[28:31], s43 offen sc1
    buffer_store_dwordx4 v[16:19], v1, s[28:31], s43 offen offset:1024 sc1
    buffer_store_dwordx4 v[16:19], v1, s[28:31], s44 offen sc1
    buffer_store_dwordx4 v[16:19], v1, s[28:31], s44 offen offset:1024 sc1
    """)
    block(4)
    a(f"""
    s_lshl_b32 s43, s17, 2
    s_add_u32 s44, s43, s16
    s_lshl_b32 s44, s44, 5
    s_add_u32 s44, s44, s18
    s_lshl_b32 s44, s44, 7
    s_add_u32 s44, s44, {hex(F2_OFF)}
    s_mov_b64 exec, 1
    buffer_store_dwordx2 v[2:3], v11, s[28:31], s44 offen sc1
    s_mov_b64 exec, -1
    s_add_u32 s43, s43, s19
    s_lshl_b32 s43, s43, 1
    s_add_u32 s43, s43, s34
    s_lshl_b32 s43, s43, 11
    s_add_u32 s45, s43, {hex(F2_OFF)}
    """)
    a(f"""
    v_and_b32 v6, 31, v0
    v_lshlrev_b32 v7, 2, v6
    s_lshl_b32 s43, s35, 7
    s_add_u32 s43, s43, {GP}
    v_add_u32 v7, s43, v7
    ds_read_b32 v16, v7
    ds_read_b32 v17, v7 offset:256
    ds_read_b32 v18, v7 offset:512
    ds_read_b32 v19, v7 offset:768
    s_cmp_eq_u32 s34, 0
    s_cselect_b32 s43, 1.0, -1.0
    s_cselect_b32 s44, 0, 1.0
    v_mov_b32 v20, s44
    s_waitcnt lgkmcnt(0)
    v_add_f32 v16, v16, v17
    v_add_f32 v18, v18, v19
    v_add_f32 v16, v16, v18
    v_mul_f32 v16, {hex(LOG2E | 0x80000000)}, v16
    v_exp_f32 v16, v16
    s_nop 0
    v_add_f32 v16, 1.0, v16
    v_rcp_f32 v16, v16
    s_nop 0
    v_fma_f32 v13, v16, s43, v20
    """)
    a(f"""
    v_lshrrev_b32 v7, 5, v0
    v_lshlrev_b32 v10, 10, v6
    v_lshl_add_u32 v10, v7, 6, v10
    v_lshrrev_b32 v4, 3, v0
    v_and_b32 v6, 7, v0
    v_bfe_u32 v8, v0, 4, 1
    v_lshlrev_b32 v9, 1, v8
    v_xor_b32 v6, v9, v6
    v_lshlrev_b32 v6, 4, v6
    v_lshl_add_u32 v4, v4, 10, v6
    v_bfe_u32 v6, v0, 2, 2
    v_lshl_add_u32 v7, v7, 3, v6
    v_lshlrev_b32 v7, 7, v7
    v_lshl_add_u32 v7, v8, 4, v7
    v_and_b32 v8, 1, v0
    v_lshl_add_u32 v7, v8, 6, v7
    v_bfe_u32 v8, v0, 1, 1
    v_lshl_add_u32 v7, v8, 3, v7
    v_lshrrev_b32 v6, 1, v6
    v_lshl_add_u32 v7, v6, 5, v7
    s_mul_i32 s46, s16, 6144
    s_add_u32 s46, s46, {STG}
    v_add_u32 v8, s46, v7
    v_xor_b32 v9, 32, v8
    s_lshl_b32 s47, s3, 7
    """)
    def wround(s0, n):
        for p in range(2 * n):
            a(f"s_add_u32 m0, s46, {p*1024}\ns_add_u32 s43, s47, {(2*s0+p)*8192}\nbuffer_load_dwordx4 v4, s[20:23], s43 offen lds")
        a("s_waitcnt vmcnt(0)")
        for s in range(n):
            for c in range(2):
                for e in range(2): a(f"ds_read_b64_tr_b16 {vr(WR+8*(s0+s)+4*c+2*e,2)}, v{8+c} offset:{s*2048+e*512}")
        a("s_waitcnt lgkmcnt(0)")
    wround(0, 3); wround(3, 3)
    block(5)
    wround(6, 2)
    block(6); block(7)
    a(f"""
    v_lshlrev_b32 v6, 7, v0
    H_F2:
    """)
    spin(a)
    a(f"""
    s_mov_b64 exec, 0xffff
    buffer_load_dwordx2 v[16:17], v6, s[28:31], s45 offen sc1
    s_waitcnt vmcnt(0)
    v_cmp_eq_u64 vcc, s[32:33], v[16:17]
    s_mov_b64 exec, -1
    s_cmp_eq_u32 vcc_lo, 0xffff
    s_cbranch_scc0 H_F2
    s_lshl_b32 s46, s34, 14
    v_add_u32 v8, s46, v7
    v_xor_b32 v9, 32, v8
    v_add_u32 v6, 0x10000, v8
    v_add_u32 v7, 0x10000, v9
    s_lshl_b32 s43, s35, 10
    s_add_u32 s46, s46, s43
    s_lshl_b32 s43, s35, 13
    s_add_u32 s47, s47, s43
    """)
    for k in range(3):
        wait_rel(5 + k, f"W{k}")
        for p in range(8):
            a(f"s_add_u32 m0, s46, {k*32768 + p*2048}\ns_add_u32 s43, s47, {(8+8*k+p)*16384}\nbuffer_load_dwordx4 v4, s[20:23], s43 offen lds")
    a(f"""
    s_lshl_b32 s43, s17, 3
    s_lshl_b32 s44, s19, 1
    s_add_u32 s43, s43, s44
    s_add_u32 s43, s43, s35
    s_lshl_b32 s44, s43, 16
    s_lshl_b32 s45, s34, 15
    s_add_u32 s44, s44, s45
    s_add_u32 s48, s44, {hex(O_OFF)}
    """)
    for g in range(1, 8): a(f"s_add_u32 s{48+g}, s48, {g*4096}")
    a(f"""
    s_lshl_b32 s43, s43, 15
    s_lshl_b32 s44, s3, 7
    s_add_u32 s43, s43, s44
    s_lshl_b32 s44, s34, 5
    s_add_u32 s43, s43, s44
    s_lshl_b32 s44, s16, 12
    s_add_u32 s44, s44, {XCH}
    v_add_u32 v4, s44, v1
    v_xor_b32 v5, 0x2000, v4
    s_waitcnt vmcnt(0)
    """)
    stamp(a, "hBBw")
    a("s_barrier")
    stamp(a, "hBB")
    if STAMPS: a("s_mov_b32 s101, 0x100000")
    def oload(g): return [f"buffer_load_dwordx4 {vr(OF+16*g+4*n,4)}, v1, s[28:31], s{48+g} offen offset:{n*1024} sc1" for n in range(4)]
    def check(g):
        f = OF + 16 * g
        L = [f"v_max3_u32 v11, v{f}, v{f+1}, v{f+2}"]
        for i in range(6): L.append(f"v_max3_u32 v11, v11, v{f+3+2*i}, v{f+4+2*i}")
        L += [f"v_max_u32 v11, v11, v{f+15}", "v_cmp_eq_u32 vcc, -1, v11"]
        return L
    def wreads(s):
        k, p = divmod(s - 8, 8)
        f = WF + 8 * (s & 1)
        return [f"ds_read_b64_tr_b16 {vr(f+4*c+2*e,2)}, v{(6 if k == 2 else 8)+c} offset:{(k&1)*32768+p*2048+e*512}" for c in range(2) for e in range(2)]
    for g in range(4):
        for x in oload(g): a(x)
    a("s_waitcnt vmcnt(12)")
    for x in check(0): a(x)
    a("s_cbranch_vccnz H_RETRY0\nH_GO0:")
    stamp(a, "hG0")
    for s in range(32):
        g = s >> 2
        w = WR + 8 * s if s < 8 else WF + 8 * (s & 1)
        M = [f"v_mfma_f32_32x32x16_bf16 {vr(ACC+16*c,16)}, {vr(w+4*c,4)}, {vr(OF+4*s,4)}, {vr(ACC+16*c,16) if s else 0}" for c in range(2)]
        if s >= 8: a("s_waitcnt lgkmcnt(0)")
        a(M[0])
        if 7 <= s < 31:
            for x in wreads(s + 1): a(x)
        if g < 4 and s % 4 < 2:
            for x in oload(g + 4)[2 * (s % 4):2 * (s % 4) + 2]: a(x)
        if s % 4 == 3 and g < 7:
            a(f"s_waitcnt vmcnt({min(12, 4 * (6 - g))})")
            for x in check(g + 1)[:5]: a(x)
        a(M[1])
        if s % 4 == 3 and g < 7:
            for x in check(g + 1)[5:]: a(x)
            a(f"s_cbranch_vccnz H_RETRY{g+1}\nH_GO{g+1}:")
            stamp(a, f"hG{g+1}")
    stamp(a, "hMF")
    a("s_cmp_eq_u32 s34, 0\ns_cbranch_scc1 H_B0\ns_nop 8")
    def xchg(keep):
        give = ACC + 16 * (1 - keep); kp = ACC + 16 * keep
        for i in range(4):
            for r in range(0, 4, 2): a(f"v_pk_mul_f32 {vr(give+4*i+r,2)}, {vr(give+4*i+r,2)}, v[12:13] op_sel:[0,1]")
            a(f"ds_write_b128 v4, {vr(give+4*i,4)} offset:{i*1024}")
        a("s_waitcnt lgkmcnt(0)\ns_barrier")
        for i in range(4): a(f"ds_read_b128 {vr(OF+4*i,4)}, v5 offset:{i*1024}")
        for i in range(4):
            a(f"s_waitcnt lgkmcnt({3-i})")
            for r in range(0, 4, 2): a(f"v_pk_fma_f32 {vr(kp+4*i+r,2)}, {vr(kp+4*i+r,2)}, v[12:13], {vr(OF+4*i+r,2)} op_sel:[0,1,0]")
            for r in range(2): a(f"v_cvt_pk_bf16_f32 v{WF+2*i+r}, v{kp+4*i+2*r}, v{kp+4*i+2*r+1}")
    xchg(1)
    a("s_branch H_ST\nH_B0:\ns_nop 9")
    xchg(0)
    a(f"""
    H_ST:
    """)
    stamp(a, "hXC"); stamp(a, "hnSPIN")
    a(f"""
    buffer_store_dwordx4 {vr(WF,4)}, v10, s[24:27], s43 offen
    buffer_store_dwordx4 {vr(WF+4,4)}, v10, s[24:27], s43 offen offset:16
    """)
    if STAMPS: a("s_add_u32 s16, s16, 4")
    stamp_flush(a)
    a("s_endpgm")
    for g in range(8):
        a(f"H_RETRY{g}:")
        spin(a)
        for gg in range(g, min(g + 4, 8)):
            for x in oload(gg): a(x)
        a("s_waitcnt vmcnt(0)")
        for x in check(g): a(x)
        a(f"s_cbranch_vccnz H_RETRY{g}\ns_branch H_GO{g}")

def main(out):
    ref = open(f"cdna_kernels/{NAME}.s.ref").read().split("\n")
    hdr = [l for l in ref if l.startswith(";") and "@launch" not in l and "Override launch" not in l and "grid=ceil" not in l]
    lab = NAME + "_kernel"
    a = Asm()
    a(f".globl {lab}\n.p2align 8\n.type {lab},@function\n{lab}:")
    prologue(a); compute_phase1(a); attention(a); helper(a)
    desc = f""".p2align 6
.amdhsa_kernel {lab}
  .amdhsa_next_free_vgpr 256
  .amdhsa_next_free_sgpr 102
  .amdhsa_accum_offset 256
  .amdhsa_group_segment_fixed_size 0
  .amdhsa_kernarg_size 80
  .amdhsa_user_sgpr_count 2
  .amdhsa_user_sgpr_kernarg_segment_ptr 1
  .amdhsa_system_sgpr_workgroup_id_x 1
.end_amdhsa_kernel
"""
    if STAMPS: hdr = hdr + ["; stamps " + " | ".join(SETS[OPT["stamps"]])]
    s = "\n".join(hdr + ["; @launch grid=(256,1,1) block=(512,1,1) lds=163840"]) + '\n.amdgcn_target "amdgcn-amd-amdhsa--gfx950"\n.text\n' + a.text()
    s += '.section .rodata,"a"\n' + desc
    open(out, "w").write(s)

if __name__ == "__main__":
    args = [x for x in sys.argv[1:] if not x.startswith("--")]
    main(args[0] if args else f"cdna_kernels/{NAME}.s")
```

```python
import sys
NAME = "gated_mix__softmax_full_mha__softmax_full_mha__prompt"
O_OFF, F1_OFF, F2_OFF = 8 << 20, 12 << 20, (12 << 20) + (128 << 10)
WS_BYTES = 13 << 20
QSCALE = 0x3EB8AA3B
LOG2E = 0x3FB8AA3B
SLOT = 45056
QX, STG, GP, LANDED, REL, XCH, TAGL = 135168, 131072, 155648, 156672, 157696, 131072, 158720
OPT = {x[2:].split("=")[0]: (x.split("=")[1] if "=" in x else True) for x in sys.argv[1:] if x.startswith("--")}
STAMPS = "stamps" in OPT
STAMP_OFF = 20 << 20
SREG = [96, 84, 86, 88, 90, 92, 94, 98]

class Asm:
    def __init__(self): self.L = []
    def __call__(self, s):
        for x in s.strip("\n").split("\n"):
            x = x.strip()
            if not x: continue
            self.L.append(x if x.endswith(":") or x.startswith(".") else "    " + x)
    def text(self): return "\n".join(self.L) + "\n"

def vr(a, n): return f"v[{a}:{a+n-1}]"
def srd(a, d, lo, nbytes):
    a(f"s_mov_b32 s{d}, s{lo}\ns_mov_b32 s{d+1}, s{lo+1}\ns_mov_b32 s{d+2}, {hex(nbytes)}\ns_mov_b32 s{d+3}, 0x00020000")
SETS = {True: ("aB0 aMF aST aEND cST cEND", "hB0 hP1 hBL1 hBL7 hBBw hBB"),
        "p1": ("aB0 aB2 aB4 aB6 aB7 aMF", "hB0 hB1 hB3 hB5 hB7 hP1"),
        "ho": ("aMF aP1 aST anSPIN cST cEND", "hP1 hPOLL1 hBL1 hBL2 hBL3 hBL4"),
        "tail": ("aEND aCHK aSTO aBB aX anSPIN", "hBB hG0 hG7 hMF hXC hnSPIN")}
def stamp(a, name):
    if not STAMPS: return
    if name in (0, 7): slot = name
    else:
        names = [x.split() for x in SETS[OPT["stamps"]]]
        names = names[1] if name[0] == "h" else names[0]
        if name not in names: return
        slot = names.index(name) + 1
    if str(name)[1:] == "nSPIN":
        a(f"s_sub_u32 s{SREG[slot]}, 0x100000, s101"); return
    if str(name)[1:] == "zSPIN": return
    a(f"{'s_memtime' if str(name)[0] == 'c' else 's_memrealtime'} s[{SREG[slot]}:{SREG[slot]+1}]")
def stamp_flush(a):
    if not STAMPS: return
    a("s_waitcnt vmcnt(0)")
    stamp(a, 7)
    a(f"""
    s_load_dwordx2 s[80:81], s[0:1], 72
    s_waitcnt lgkmcnt(0)
    s_mov_b32 s82, {hex(STAMP_OFF + (1 << 20))}
    s_mov_b32 s83, 0x00020000
    s_mov_b64 exec, 1
    s_lshl_b32 s78, s2, 4
    s_add_u32 s78, s78, s16
    s_lshl_b32 s79, s78, 5
    s_add_u32 s79, s79, {hex(STAMP_OFF)}
    v_mov_b32 v8, 0
    """)
    for i in range(8): a(f"v_mov_b32 v{16+i}, s{SREG[i]}")
    a("""
    buffer_store_dwordx4 v[16:19], v8, s[80:83], s79 offen
    buffer_store_dwordx4 v[20:23], v8, s[80:83], s79 offen offset:16
    s_waitcnt vmcnt(0)
    """)

SB, OA, QF, KF, VF = 16, 80, 144, 160, 168
RC = 192
POS = (2, 7, 11)
def spin(a):
    a("s_sub_u32 s101, s101, 1\ns_cbranch_scc1 K_END")

def prologue(a):
    a("""
    s_cmp_ge_u32 s2, 256
    s_cbranch_scc1 K_END
    """)
    stamp(a, 0)
    a("""
    s_load_dwordx4 s[4:7], s[0:1], 0
    s_load_dwordx2 s[8:9], s[0:1], 32
    s_load_dwordx2 s[10:11], s[0:1], 48
    s_load_dwordx4 s[12:15], s[0:1], 64
    v_lshrrev_b32 v1, 6, v0
    v_and_b32 v0, 63, v0
    v_readfirstlane_b32 s16, v1
    s_and_b32 s19, s2, 7
    s_lshr_b32 s3, s2, 3
    s_and_b32 s17, s19, 1
    s_lshl_b32 s17, s17, 2
    s_and_b32 s18, s3, 3
    s_add_u32 s17, s17, s18
    s_lshr_b32 s3, s3, 2
    s_lshr_b32 s19, s19, 1
    s_lshl_b32 s18, s19, 3
    s_add_u32 s18, s18, s3
    s_cmp_ge_u32 s18, 16
    s_waitcnt lgkmcnt(0)
    s_cselect_b32 s6, s8, s6
    s_cselect_b32 s7, s9, s7
    """)
    srd(a, 28, 14, WS_BYTES)
    a("s_mov_b32 s101, 0x100000")
    a("s_cmp_ge_u32 s16, 4\ns_cbranch_scc1 HELPER")

def compute_phase1(a):
    ACC = [QF, SB, 184, 200, 216, 232]
    FR = [32, 52]
    XA = 248
    a("""
    s_or_b32 s32, s2, s16
    s_cmp_lg_u32 s32, 0
    s_cbranch_scc1 C_NOTAG
    s_memrealtime s[32:33]
    s_mov_b32 s14, 256
    s_mov_b32 s15, 0x00020000
    v_mov_b32 v1, 0
    s_waitcnt lgkmcnt(0)
    s_or_b32 s32, s32, 1
    v_mov_b32 v2, s32
    v_mov_b32 v3, s33
    s_mov_b64 exec, 1
    buffer_store_dwordx2 v[2:3], v1, s[12:15], 0 offen sc1
    s_mov_b64 exec, -1
    C_NOTAG:
    """)
    a(f"""
    s_and_b32 s33, s16, 1
    v_and_b32 v5, 31, v0
    v_lshrrev_b32 v6, 5, v0
    v_bfe_u32 v7, v0, 1, 3
    v_lshlrev_b32 v9, 7, v5
    s_lshl_b32 s34, s16, 13
    v_add_u32 v9, s34, v9
    """)
    for s in range(4):
        a(f"v_add_u32 v10, {2*s}, v6\nv_xor_b32 v10, v10, v7\nv_lshl_add_u32 v{XA+s}, v10, 4, v9\nv_add_u32 v{XA+4+s}, {2*SLOT}, v{XA+s}")
    a(f"""
    v_bfe_u32 v9, v0, 2, 2
    v_lshl_add_u32 v9, v6, 3, v9
    v_lshlrev_b32 v9, 6, v9
    v_and_b32 v10, 3, v0
    v_lshl_add_u32 v9, v10, 3, v9
    v_bfe_u32 v10, v0, 4, 1
    v_lshl_add_u32 v1, v10, 5, v9
    v_add_u32 v1, 0x8000, v1
    v_add_u32 v2, {2*SLOT}, v1
    s_lshl_b32 s35, s33, 5
    v_xor_b32 v3, s35, v1
    v_add_u32 v4, {2*SLOT}, v3
    """)
    a(f"""
    s_lshl_b32 s35, s16, 8
    s_add_u32 s35, s35, {REL}
    v_lshlrev_b32 v13, 2, v0
    v_add_u32 v13, s35, v13
    v_mov_b32 v14, 0
    ds_write_b32 v13, v14
    v_and_b32 v11, 3, v0
    v_lshlrev_b32 v11, 8, v11
    v_add_u32 v11, {LANDED}, v11
    v_mov_b32 v8, 0xdddddddd
    v_and_b32 v9, 27, v5
    v_mov_b32 v10, 0x3f803f80
    v_cmp_eq_u32 vcc, 16, v9
    s_mov_b32 s36, 0x0000ffff
    s_mov_b32 s37, 0x0000ffff
    v_cndmask_b32 v12, 0, v10, vcc
    v_mov_b32 v14, 1
    v_lshlrev_b32 v15, 4, v0
    v_and_b32 v9, 0x33, v0
    v_bfe_u32 v10, v0, 2, 1
    v_lshl_or_b32 v9, v10, 3, v9
    v_bfe_u32 v10, v0, 3, 1
    v_lshl_or_b32 v9, v10, 2, v9
    v_lshlrev_b32 v9, 4, v9
    s_lshl_b32 s35, s33, 11
    v_add_u32 v10, s35, v9
    v_mov_b32 v9, v10
    """)
    for r in range(VF, VF + 16): a(f"v_mov_b32 v{r}, v12")
    for r in range(OA, OA + 64): a(f"v_mov_b32 v{r}, 0")
    for r in range(SB + 56, SB + 64): a(f"v_mov_b32 v{r}, 0")
    a(f"""
    v_and_b32 v7, 15, v0
    v_lshlrev_b32 v7, 4, v7
    v_lshl_add_u32 v7, v6, 9, v7
    v_bfe_u32 v6, v0, 4, 1
    v_lshl_add_u32 v6, v6, 11, v7
    v_add_u32 v6, s34, v6
    v_add_u32 v5, s34, v15
    s_lshl_b32 s35, s16, 11
    s_add_u32 s35, s35, {QX}
    v_add_u32 v7, s35, v15
    """)
    a(f"""
    s_lshl_b32 s42, s18, 18
    s_lshl_b32 s43, s17, 15
    s_add_u32 s42, s42, s43
    s_add_u32 s43, s42, 4096
    s_lshl_b32 s44, s18, 12
    s_lshl_b32 s45, s16, 7
    s_add_u32 s44, s44, s45
    s_add_u32 s44, s44, {hex(F1_OFF)}
    """)
    if "notouch" not in OPT:
        a(f"""
        v_lshlrev_b32 v{KF}, 9, v0
        s_mov_b64 exec, 0xff
        buffer_load_dword v{KF+1}, v{KF}, s[28:31], s44 offen sc1
        s_mov_b64 exec, 1
        buffer_load_dword v{KF+2}, v5, s[28:31], s42 offen sc1
        s_mov_b64 exec, -1
        """)
    def reads(c, s, buf):
        f = FR[buf]; slot = c % 3
        hi = slot == 2
        so = 0 if hi else slot * SLOT
        xr = XA + s + (4 if hi else 0)
        w = 2 if hi else 1; wq = 4 if hi else 3
        wo = so + s * 1024
        R = [f"ds_read_b128 {vr(f,4)}, v{xr} offset:{so}"]
        R += [f"ds_read_b64_tr_b16 {vr(f+12+2*e,2)}, v{w} offset:{wo+4096+e*256}" for e in range(2)]
        R += [f"ds_read_b128 {vr(f+4,4)}, v{xr} offset:{so+4096}"]
        R += [f"ds_read_b64_tr_b16 {vr(f+16+2*e,2)}, v{w} offset:{wo+8192+e*256}" for e in range(2)]
        R += [f"ds_read_b64_tr_b16 {vr(f+8+2*e,2)}, v{wq} offset:{wo+e*256}" for e in range(2)]
        return R
    a("s_waitcnt lgkmcnt(0)\ns_barrier")
    stamp(a, "aB0")
    for r in reads(0, 0, 0): a(r)
    for n in range(32):
        c, s = divmod(n, 4)
        f = FR[n & 1]
        M = []
        for part in (1, 2, 0):
            for b in range(2):
                d = ACC[2 * part + b]
                x = vr(f + 4 * b, 4); w = vr(f + 8 + 4 * part, 4)
                A, B = (w, x) if part < 2 else (x, w)
                M.append(f"v_mfma_f32_32x32x16_bf16 {vr(d,16)}, {A}, {B}, {vr(d,16) if n else 0}")
        R = reads(*divmod(n + 1, 4), (n + 1) & 1) if n < 31 else []
        a("s_waitcnt lgkmcnt(0)")
        a(M[0])
        if s == 3 and n < 31:
            a("s_barrier"); stamp(a, f"aB{c+1}")
        grp = [R[0:3], R[3:6], R[6:8], [], []]
        for i in range(5):
            for r in grp[i]: a(r)
            a(M[i + 1])
    stamp(a, "aMF")
    a(f"s_mov_b32 s40, {hex(QSCALE)}\ns_mov_b32 s41, s40\ns_waitcnt vmcnt(0)\ns_nop 4")
    for b in range(2):
        d = ACC[2 + b]
        for hd in range(2):
            for i in range(4): a(f"v_cvt_pk_bf16_f32 v{d+8*hd+i}, v{d+8*hd+2*i}, v{d+8*hd+2*i+1}")
            a(f"buffer_store_dwordx4 {vr(d+8*hd,4)}, v5, s[28:31], s{42+b} offen offset:{hd*2048} sc1")
            a(f"ds_write_b128 v5, {vr(d+8*hd,4)} offset:{b*4096 + hd*2048}")
    for b in range(2):
        d = ACC[4 + b]
        for m in range(2):
            for i in range(4): a(f"v_cvt_pk_bf16_f32 v{d+8*m+i}, v{d+8*m+2*i}, v{d+8*m+2*i+1}")
            a(f"buffer_store_dwordx4 {vr(d+8*m,4)}, v6, s[28:31], s{42+b} offen offset:{1024 + m*256} sc1")
            a(f"ds_write_b128 v6, {vr(d+8*m,4)} offset:{b*4096 + 1024 + m*256}")
    for b in range(2):
        d = ACC[b]
        for r in range(8, 16, 2): a(f"v_pk_mul_f32 {vr(d+r,2)}, {vr(d+r,2)}, s[40:41]")
        for i in range(4): a(f"v_cvt_pk_bf16_f32 v{KF+4*b+i}, v{d+8+2*i}, v{d+8+2*i+1}")
        a(f"ds_write_b128 v7, {vr(KF+4*b,4)} offset:{b*1024}")
    for b in range(2):
        d = ACC[b]
        for r in range(0, 8, 2): a(f"v_pk_mul_f32 {vr(d+r,2)}, {vr(d+r,2)}, s[40:41]")
        for i in range(4): a(f"v_cvt_pk_bf16_f32 v{QF+4*b+i}, v{d+2*i}, v{d+2*i+1}")
    a(f"""
    v_xor_b32 v7, 0x800, v7
    v_mov_b32 v1, {TAGL}
    s_lshl_b32 s45, s17, 9
    v_mov_b32 v4, s45
    v_cmp_eq_u32 vcc, 0, v0
    v_mov_b32 v2, 0x80000000
    s_nop 0
    v_cndmask_b32 v4, v2, v4, vcc
    s_waitcnt lgkmcnt(0)
    s_barrier
    """)
    stamp(a, "aP1")

def attention(a):
    a(f"""
    ds_read_b128 {vr(KF,4)}, v9
    ds_read_b128 {vr(QF+8,4)}, v7
    ds_read_b128 {vr(QF+12,4)}, v7 offset:1024
    s_mov_b64 exec, s[36:37]
    ds_read_b128 {vr(VF,4)}, v9 offset:1024
    ds_read_b128 {vr(VF+4,4)}, v9 offset:1280
    s_mov_b64 exec, -1
    ds_read_b64 v[2:3], v1
    s_mov_b32 s38, 0
    s_mov_b32 s39, 1
    s_mov_b32 s40, 8
    s_waitcnt lgkmcnt(5)
    """)
    for q in range(2):
        a(f"v_mfma_f32_32x32x16_bf16 {vr(SB+16*q,16)}, {vr(KF,4)}, {vr(QF+4*q,4)}, 0")
    a("s_waitcnt lgkmcnt(0)\ns_nop 10")
    stamp(a, "aST"); stamp(a, "cST")
    a(".p2align 6\nA_LOOP:")
    for j in range(8):
        kb = KF + 4 * (j & 1); kbn = KF + 4 * ((j + 1) & 1)
        vb = VF + 8 * (j & 1); vbn = VF + 8 * ((j + 1) & 1)
        o = ((j + 1) % 8) * 4096
        post = {(0, 0): ["s_mov_b64 exec, s[36:37]", f"ds_read_b128 {vr(vbn,4)}, v9 offset:{o+1024}",
                         f"ds_read_b128 {vr(vbn+4,4)}, v9 offset:{o+1280}", "s_mov_b64 exec, -1"],
                (0, 2): [f"ds_read_b128 {vr(kbn,4)}, v9 offset:{o}"],
                (2, 0): ["s_waitcnt lgkmcnt(0)"]}
        fj, fq = divmod(int(OPT.get("fpos", 6)), 4)
        if j == fj:
            post[(fq, 0)] = post.get((fq, 0), []) + ["s_waitcnt vmcnt(0)"]
            post[(fq, 1)] = ["buffer_store_dwordx2 v[2:3], v4, s[28:31], s44 offen sc1"]
        if j == 6:
            post[(1, 0)] = ["s_add_u32 s38, s38, 0x8000", "s_and_b32 s38, s38, 0x1ffff"]
            post[(2, 2)] = ["ds_add_u32 v13, v14"]
            post[(3, 0)] = ["v_add_u32 v9, s38, v10"]
        if j == 7:
            post[(1, 0)] = ["s_cbranch_vccnz A_WAIT", "A_BACK:"] + post[(0, 2)] + post[(0, 0)]
            post[(0, 0)] = ["ds_read_b32 v12, v11"]
            post[(0, 2)] = ["s_waitcnt lgkmcnt(0)", "v_cmp_gt_u32 vcc, s39, v12"]
            post[(2, 2)] = ["s_add_u32 s39, s39, 1", "s_min_u32 s39, s39, 7"]
            post[(3, 0)] = ["s_sub_u32 s40, s40, 1", "s_cmp_lg_u32 s40, 0"]
        for q in range(4):
            n = 4 * j + q
            cur = SB + 16 * (n % 4); prev = SB + 16 * ((n - 1) % 4); nxt = SB + 16 * ((n + 2) % 4)
            oprev = OA + 16 * ((q - 1) % 4); ocur = OA + 16 * q
            vprev = (vbn if q == 0 else vb) + 4
            q2 = (q + 2) % 4; k2 = kb if q < 2 else kbn
            M = [f"v_smfmac_f32_32x32x32_bf16 {vr(oprev,16)}, {vr(vprev,4)}, {vr(prev+8,8)}, v8",
                 f"v_mfma_f32_32x32x16_bf16 {vr(nxt,16)}, {vr(k2,4)}, {vr(QF+4*q2,4)}, 0",
                 f"v_smfmac_f32_32x32x32_bf16 {vr(ocur,16)}, {vr(vb,4)}, {vr(cur,8)}, v8"]
            for e in range(16):
                for m in range(3):
                    if e == POS[m]:
                        a(M[m])
                        for x in post.get((q, m), []): a(x)
                a(f"v_exp_f32 v{cur+e}, v{cur+e}")
    a(f"""
    s_cbranch_scc1 A_LOOP
    s_nop 0
    v_smfmac_f32_32x32x32_bf16 {vr(OA+48,16)}, {vr(VF+12,4)}, {vr(SB+56,8)}, v8
    """)
    stamp(a, "aEND"); stamp(a, "cEND")
    a(f"""
    s_lshl_b32 s42, s17, 3
    s_lshl_b32 s43, s16, 1
    s_add_u32 s42, s42, s43
    s_lshl_b32 s42, s42, 16
    s_lshl_b32 s43, s18, 1
    s_add_u32 s43, s43, s33
    s_lshl_b32 s43, s43, 10
    s_add_u32 s42, s42, s43
    s_add_u32 s42, s42, {hex(O_OFF)}
    s_add_u32 s43, s42, 0x10000
    s_xor_b32 s44, s42, 0x20000
    s_xor_b32 s45, s43, 0x20000
    s_mov_b32 s46, 0x17800000
    s_mov_b32 s47, 0x67800000
    v_mov_b32 v2, 0
    v_mov_b32 v3, 0
    v_min3_f32 v4, v{OA+8}, v{OA+24}, v{OA+40}
    v_max3_f32 v5, v{OA+8}, v{OA+24}, v{OA+40}
    """)
    for q in range(4):
        for r in range(0, 8, 2): a(f"v_pk_fma_f32 v[2:3], {vr(OA+16*q+r,2)}, 0, v[2:3]")
    a(f"""
    v_min_f32 v4, v4, v{OA+56}
    v_max_f32 v5, v5, v{OA+56}
    v_add_f32 v2, v2, v3
    v_cmp_lt_f32 s[48:49], s46, v4
    v_cmp_gt_f32 s[50:51], s47, v5
    v_cmp_eq_f32 vcc, 0, v2
    """)
    for q in range(4): a(f"v_rcp_f32 v{RC+2*q}, v{OA+16*q+8}")
    a("""
    s_and_b64 s[48:49], s[48:49], s[50:51]
    s_and_b64 s[48:49], s[48:49], vcc
    s_cmp_eq_u64 s[48:49], -1
    s_cbranch_scc0 A_SLOW
    """)
    stamp(a, "aCHK")
    def norm(q, clamp):
        for r in range(0, 8, 2):
            a(f"v_pk_mul_f32 {vr(OA+16*q+r,2)}, {vr(OA+16*q+r,2)}, {vr(RC+2*q,2)} op_sel_hi:[1,0]")
        for i in range(4): a(f"v_cvt_pk_bf16_f32 v{SB+4*q+i}, v{OA+16*q+2*i}, v{OA+16*q+2*i+1}")
        if clamp:
            for i in range(4): a(f"v_min_u32 v{SB+4*q+i}, -2, v{SB+4*q+i}")
        a(f"buffer_store_dwordx4 {vr(SB+4*q,4)}, v15, s[28:31], s{42+q} offen sc1")
    for q in range(4): norm(q, False)
    a("A_DONE:")
    if "drain" in OPT: a("s_waitcnt vmcnt(0)")
    stamp(a, "aSTO")
    a("s_barrier")
    stamp(a, "aBB")
    a("s_barrier")
    stamp(a, "aX"); stamp(a, "anSPIN")
    stamp_flush(a)
    a("K_END:\ns_endpgm")
    a("A_WAIT:")
    spin(a)
    a("""
    ds_read_b32 v12, v11
    s_waitcnt lgkmcnt(0)
    v_cmp_gt_u32 vcc, s39, v12
    s_cbranch_vccnz A_WAIT
    s_branch A_BACK
    """)
    a(f"""
    A_SLOW:
    s_lshl_b32 s38, s18, 18
    s_mov_b32 s40, 64
    """)
    for q in range(4): a(f"v_mov_b32 v{184+q}, 0xff800000")
    a(f"""
    A_MAXLOOP:
    buffer_load_dwordx4 {vr(KF,4)}, v10, s[28:31], s38 offen sc1
    s_add_u32 s38, s38, 4096
    s_waitcnt vmcnt(0)
    """)
    for q in range(4): a(f"v_mfma_f32_32x32x16_bf16 {vr(SB+16*q,16)}, {vr(KF,4)}, {vr(QF+4*q,4)}, 0")
    a("s_nop 11")
    for q in range(4):
        for i in range(8): a(f"v_max3_f32 v{184+q}, v{184+q}, v{SB+16*q+2*i}, v{SB+16*q+2*i+1}")
    a("s_sub_u32 s40, s40, 1\ns_cmp_lg_u32 s40, 0\ns_cbranch_scc1 A_MAXLOOP")
    for q in range(4): a(f"v_mov_b32 v{188+q}, v{184+q}")
    a("s_nop 1")
    for q in range(4): a(f"v_permlane32_swap_b32 v{184+q}, v{188+q}")
    a("s_nop 1")
    for q in range(4): a(f"v_max_f32 v{184+q}, v{184+q}, v{188+q}")
    for r in range(OA, OA + 64): a(f"v_mov_b32 v{r}, 0")
    a(f"""
    s_lshl_b32 s38, s18, 18
    s_mov_b32 s40, 64
    A_EXPLOOP:
    buffer_load_dwordx4 {vr(KF,4)}, v10, s[28:31], s38 offen sc1
    s_mov_b64 exec, s[36:37]
    buffer_load_dwordx4 {vr(VF,4)}, v10, s[28:31], s38 offen offset:1024 sc1
    buffer_load_dwordx4 {vr(VF+4,4)}, v10, s[28:31], s38 offen offset:1280 sc1
    s_mov_b64 exec, -1
    s_add_u32 s38, s38, 4096
    s_waitcnt vmcnt(0)
    """)
    for q in range(4): a(f"v_mfma_f32_32x32x16_bf16 {vr(SB+16*q,16)}, {vr(KF,4)}, {vr(QF+4*q,4)}, 0")
    a("s_nop 11")
    for q in range(4):
        for e in range(16): a(f"v_sub_f32 v{SB+16*q+e}, v{SB+16*q+e}, v{184+q}")
        for e in range(16): a(f"v_exp_f32 v{SB+16*q+e}, v{SB+16*q+e}")
        a("s_nop 1")
        a(f"v_smfmac_f32_32x32x32_bf16 {vr(OA+16*q,16)}, {vr(VF,4)}, {vr(SB+16*q,8)}, v8")
        a(f"v_smfmac_f32_32x32x32_bf16 {vr(OA+16*q,16)}, {vr(VF+4,4)}, {vr(SB+16*q+8,8)}, v8")
    a("s_sub_u32 s40, s40, 1\ns_cmp_lg_u32 s40, 0\ns_cbranch_scc1 A_EXPLOOP\ns_nop 11")
    for q in range(4): a(f"v_rcp_f32 v{RC+2*q}, v{OA+16*q+8}")
    a("s_nop 0")
    for q in range(4): norm(q, True)
    a("s_branch A_DONE")

def helper(a):
    GW = 128
    a("""
    HELPER:
    s_sub_u32 s16, s16, 4
    s_lshl_b32 s8, s16, 5
    s_add_u32 s10, s10, s8
    s_addc_u32 s11, s11, 0
    """)
    stamp(a, "hARG")
    ROT = int(OPT.get("rot", 6))
    a(f"""
    s_lshr_b32 s9, s2, 3
    s_and_b32 s9, s9, 3
    s_lshl_b32 s9, s9, 1
    s_add_u32 s9, s9, s3
    s_and_b32 s9, s9, {ROT}
    """)
    for c in range(8):
        if ROT: a(f"s_add_u32 s8, s9, {c}\ns_and_b32 s8, s8, 7\ns_lshl_b32 s8, s8, 7\ns_load_dwordx8 s[{32+8*c}:{39+8*c}], s[10:11], s8")
        else: a(f"s_load_dwordx8 s[{32+8*c}:{39+8*c}], s[10:11], {c*128}")
    srd(a, 20, 4, 2048 * 1024)
    srd(a, 24, 6, 512 * 3072)
    a("""
    s_mov_b32 s14, 256
    s_mov_b32 s15, 0x00020000
    v_lshrrev_b32 v1, 3, v0
    v_and_b32 v2, 7, v0
    v_lshrrev_b32 v3, 4, v0
    s_and_b32 s4, s16, 1
    s_lshl_b32 s4, s4, 2
    v_add_u32 v4, s4, v3
    v_xor_b32 v4, v4, v2
    v_lshlrev_b32 v4, 4, v4
    v_lshl_add_u32 v4, v1, 10, v4
    v_lshrrev_b32 v1, 2, v0
    v_mul_u32_u24 v5, 3072, v1
    v_and_b32 v2, 3, v0
    v_lshl_add_u32 v5, v2, 4, v5
    s_lshl_b32 s4, s17, 18
    s_lshl_b32 s5, s16, 13
    s_add_u32 s4, s4, s5
    s_mul_i32 s5, s16, 49152
    s_and_b32 s6, s18, 15
    s_lshl_b32 s6, s6, 6
    s_add_u32 s5, s5, s6
    s_lshl_b32 s6, s16, 10
    """)
    def chunk(c):
        so = (c % 3) * SLOT
        a(f"s_add_u32 s8, s9, {c}\ns_and_b32 s8, s8, 7\ns_mul_i32 s10, s8, {64*3072}\ns_add_u32 s10, s10, s5\ns_lshl_b32 s8, s8, 7\ns_add_u32 s8, s8, s4")
        for i in range(8):
            if i < 3:
                part = (1, 2, 0)[i]
                a(f"s_add_u32 m0, s6, {so + 32768 + part*4096}")
                a(f"s_add_u32 s7, s10, {part*1024}")
                a("buffer_load_dwordx4 v5, s[24:27], s7 offen lds")
            a(f"s_add_u32 m0, s6, {so + i*4096}")
            a(f"s_add_u32 s7, s8, {i*32768}")
            a("buffer_load_dwordx4 v4, s[20:23], s7 offen lds")
    EARLY = "late0" not in OPT
    for c in range(2 if EARLY else 3):
        chunk(c); stamp(a, f"hC{c}")
    a(f"""
    s_lshl_b32 s7, s16, 8
    s_add_u32 s8, s7, {LANDED}
    v_lshlrev_b32 v13, 2, v0
    v_add_u32 v12, s8, v13
    v_mov_b32 v6, 0
    ds_write_b32 v12, v6
    s_add_u32 s8, s7, {GP}
    v_add_u32 v13, s8, v13
    v_bfe_u32 v1, v0, 1, 3
    s_lshl_b32 s8, s16, 1
    v_xor_b32 v1, s8, v1
    v_lshlrev_b32 v1, 4, v1
    v_lshl_add_u32 v1, v0, 7, v1
    s_lshl_b32 s8, s19, 13
    v_add_u32 v7, s8, v1
    v_xor_b32 v8, 16, v7
    v_add_u32 v9, {2*SLOT}, v7
    v_add_u32 v10, {2*SLOT}, v8
    v_mov_b32 v11, 0
    s_waitcnt lgkmcnt(0)
    """)
    for i in range(64): a(f"v_mov_b32 v{GW+i}, s{32+i}")
    def gate(c):
        hi = c % 3 == 2
        so = 0 if hi else (c % 3) * SLOT
        a(f"ds_read_b128 v[16:19], v{9 if hi else 7} offset:{so}\nds_read_b128 v[20:23], v{10 if hi else 8} offset:{so}")
        a("s_waitcnt lgkmcnt(0)")
        for i in range(8): a(f"v_dot2_f32_bf16 v6, v{16+i}, v{GW+8*c+i}, v6")
    a(f"s_waitcnt vmcnt({11 if EARLY else 22})\ns_barrier")
    stamp(a, "hB0")
    for c in range(7):
        if (0 if EARLY else 1) <= c <= 5: chunk(c + 2)
        if c == 5: a("buffer_load_dwordx2 v[2:3], v11, s[12:15], 0 offen sc1")
        gate(c)
        a(f"s_waitcnt vmcnt({11 if c < 5 else 12 if c == 5 else 1})\ns_barrier")
        stamp(a, f"hB{c+1}")
    gate(7)
    a(f"""
    s_load_dwordx2 s[4:5], s[0:1], 16
    s_load_dwordx2 s[6:7], s[0:1], 40
    s_load_dwordx2 s[8:9], s[0:1], 56
    s_nop 0
    ds_write_b32 v13, v6
    H_TAG:
    s_waitcnt vmcnt(0)
    v_readfirstlane_b32 s32, v2
    v_readfirstlane_b32 s33, v3
    s_cmp_lg_u32 s32, 0
    s_cbranch_scc1 H_TAGOK
    """)
    spin(a)
    a(f"""
    buffer_load_dwordx2 v[2:3], v11, s[12:15], 0 offen sc1
    s_branch H_TAG
    H_TAGOK:
    s_lshr_b32 s34, s16, 1
    s_and_b32 s35, s16, 1
    s_cmp_eq_u32 s34, 1
    s_waitcnt lgkmcnt(0)
    s_cselect_b32 s4, s6, s4
    s_cselect_b32 s5, s7, s5
    """)
    srd(a, 20, 4, 512 * 1024)
    srd(a, 24, 8, 2048 * 1024)
    OF, WR, ACC, WF = 64, 192, 32, 16
    a(f"""
    v_lshlrev_b32 v1, 4, v0
    s_lshl_b32 s36, s16, 13
    v_add_u32 v4, s36, v1
    s_lshl_b32 s37, s18, 18
    s_add_u32 s37, s37, s36
    s_lshl_b32 s38, s17, 15
    s_add_u32 s38, s38, s37
    s_add_u32 s39, s38, 4096
    v_xor_b32 v5, s17, v0
    v_and_b32 v5, 7, v5
    v_lshlrev_b32 v5, 9, v5
    s_lshl_b32 s40, s18, 12
    s_lshl_b32 s41, s16, 7
    s_add_u32 s40, s40, s41
    s_add_u32 s40, s40, {hex(F1_OFF)}
    v_and_b32 v14, 3, v0
    v_lshlrev_b32 v14, 8, v14
    v_add_u32 v14, {REL}, v14
    v_mov_b32 v15, 1
    v_mov_b32 v16, {TAGL}
    ds_write_b64 v16, v[2:3]
    s_waitcnt lgkmcnt(0)
    s_barrier
    """)
    stamp(a, "hP1")
    a("s_mov_b32 s42, 0")
    def wait_rel(n, tag):
        a(f"H_REL{tag}:")
        spin(a)
        a(f"""
        ds_read_b32 v22, v14
        s_waitcnt lgkmcnt(0)
        v_cmp_gt_u32 vcc, {n}, v22
        s_cbranch_vccz H_RELOK{tag}
        s_sleep 4
        s_branch H_REL{tag}
        H_RELOK{tag}:
        """)
    def block(b):
        if b >= 4: wait_rel(b - 3, f"B{b}")
        a(f"""
        H_FLAG{b}:
        s_bitcmp1_b32 s42, {b}
        s_cbranch_scc1 H_FLAGOK{b}
        """)
        spin(a)
        a(f"""
        s_mov_b64 exec, 0xff
        buffer_load_dwordx2 v[20:21], v5, s[28:31], s40 offen sc1
        s_waitcnt vmcnt(0)
        v_cmp_eq_u64 vcc, s[32:33], v[20:21]
        s_mov_b64 exec, -1
        s_mov_b32 s42, vcc_lo
        s_branch H_FLAG{b}
        H_FLAGOK{b}:
        s_xor_b32 s43, s17, {b}
        s_lshl_b32 s43, s43, 15
        s_add_u32 s43, s43, s37
        """)
        stamp(a, f"hPOLL{b}")
        for hf in range(2):
            a(f"s_add_u32 m0, s36, {(b % 4) * 32768 + hf * 4096}")
            a(f"s_add_u32 s44, s43, {hf * 4096}")
            for n in range(4): a(f"buffer_load_dwordx4 v1, s[28:31], s44 offen offset:{n*1024} sc1 lds")
        a("s_waitcnt vmcnt(0)\nds_add_u32 v12, v15")
        stamp(a, f"hBL{b}")
    block(1)
    block(2); block(3)
    a(f"""
    s_lshl_b32 s43, s17, 3
    s_lshl_b32 s44, s16, 1
    s_add_u32 s43, s43, s44
    s_lshl_b32 s43, s43, 16
    s_lshl_b32 s44, s18, 11
    s_add_u32 s43, s43, s44
    s_add_u32 s43, s43, {hex(O_OFF)}
    s_add_u32 s44, s43, 0x10000
    v_mov_b32 v16, -1
    v_mov_b32 v17, -1
    v_mov_b32 v18, -1
    v_mov_b32 v19, -1
    buffer_store_dwordx4 v[16:19], v1, s[28:31], s43 offen sc1
    buffer_store_dwordx4 v[16:19], v1, s[28:31], s43 offen offset:1024 sc1
    buffer_store_dwordx4 v[16:19], v1, s[28:31], s44 offen sc1
    buffer_store_dwordx4 v[16:19], v1, s[28:31], s44 offen offset:1024 sc1
    """)
    block(4)
    a(f"""
    s_lshl_b32 s43, s17, 2
    s_add_u32 s44, s43, s16
    s_lshl_b32 s44, s44, 5
    s_add_u32 s44, s44, s18
    s_lshl_b32 s44, s44, 7
    s_add_u32 s44, s44, {hex(F2_OFF)}
    s_mov_b64 exec, 1
    buffer_store_dwordx2 v[2:3], v11, s[28:31], s44 offen sc1
    s_mov_b64 exec, -1
    s_add_u32 s43, s43, s19
    s_lshl_b32 s43, s43, 1
    s_add_u32 s43, s43, s34
    s_lshl_b32 s43, s43, 11
    s_add_u32 s45, s43, {hex(F2_OFF)}
    """)
    a(f"""
    v_and_b32 v6, 31, v0
    v_lshlrev_b32 v7, 2, v6
    s_lshl_b32 s43, s35, 7
    s_add_u32 s43, s43, {GP}
    v_add_u32 v7, s43, v7
    ds_read_b32 v16, v7
    ds_read_b32 v17, v7 offset:256
    ds_read_b32 v18, v7 offset:512
    ds_read_b32 v19, v7 offset:768
    s_cmp_eq_u32 s34, 0
    s_cselect_b32 s43, 1.0, -1.0
    s_cselect_b32 s44, 0, 1.0
    v_mov_b32 v20, s44
    s_waitcnt lgkmcnt(0)
    v_add_f32 v16, v16, v17
    v_add_f32 v18, v18, v19
    v_add_f32 v16, v16, v18
    v_mul_f32 v16, {hex(LOG2E | 0x80000000)}, v16
    v_exp_f32 v16, v16
    s_nop 0
    v_add_f32 v16, 1.0, v16
    v_rcp_f32 v16, v16
    s_nop 0
    v_fma_f32 v13, v16, s43, v20
    """)
    a(f"""
    v_lshrrev_b32 v7, 5, v0
    v_lshlrev_b32 v10, 10, v6
    v_lshl_add_u32 v10, v7, 6, v10
    v_lshrrev_b32 v4, 3, v0
    v_and_b32 v6, 7, v0
    v_bfe_u32 v8, v0, 4, 1
    v_lshlrev_b32 v9, 1, v8
    v_xor_b32 v6, v9, v6
    v_lshlrev_b32 v6, 4, v6
    v_lshl_add_u32 v4, v4, 10, v6
    v_bfe_u32 v6, v0, 2, 2
    v_lshl_add_u32 v7, v7, 3, v6
    v_lshlrev_b32 v7, 7, v7
    v_lshl_add_u32 v7, v8, 4, v7
    v_and_b32 v8, 1, v0
    v_lshl_add_u32 v7, v8, 6, v7
    v_bfe_u32 v8, v0, 1, 1
    v_lshl_add_u32 v7, v8, 3, v7
    v_lshrrev_b32 v6, 1, v6
    v_lshl_add_u32 v7, v6, 5, v7
    s_mul_i32 s46, s16, 6144
    s_add_u32 s46, s46, {STG}
    v_add_u32 v8, s46, v7
    v_xor_b32 v9, 32, v8
    s_lshl_b32 s47, s3, 7
    """)
    def wround(s0, n):
        for p in range(2 * n):
            a(f"s_add_u32 m0, s46, {p*1024}\ns_add_u32 s43, s47, {(2*s0+p)*8192}\nbuffer_load_dwordx4 v4, s[20:23], s43 offen lds")
        a("s_waitcnt vmcnt(0)")
        for s in range(n):
            for c in range(2):
                for e in range(2): a(f"ds_read_b64_tr_b16 {vr(WR+8*(s0+s)+4*c+2*e,2)}, v{8+c} offset:{s*2048+e*512}")
        a("s_waitcnt lgkmcnt(0)")
    wround(0, 3); wround(3, 3)
    block(5)
    wround(6, 2)
    block(6); block(7)
    a(f"""
    v_lshlrev_b32 v6, 7, v0
    H_F2:
    """)
    spin(a)
    a(f"""
    s_mov_b64 exec, 0xffff
    buffer_load_dwordx2 v[16:17], v6, s[28:31], s45 offen sc1
    s_waitcnt vmcnt(0)
    v_cmp_eq_u64 vcc, s[32:33], v[16:17]
    s_mov_b64 exec, -1
    s_cmp_eq_u32 vcc_lo, 0xffff
    s_cbranch_scc0 H_F2
    s_lshl_b32 s46, s34, 14
    v_add_u32 v8, s46, v7
    v_xor_b32 v9, 32, v8
    v_add_u32 v6, 0x10000, v8
    v_add_u32 v7, 0x10000, v9
    s_lshl_b32 s43, s35, 10
    s_add_u32 s46, s46, s43
    s_lshl_b32 s43, s35, 13
    s_add_u32 s47, s47, s43
    """)
    for k in range(3):
        wait_rel(5 + k, f"W{k}")
        for p in range(8):
            a(f"s_add_u32 m0, s46, {k*32768 + p*2048}\ns_add_u32 s43, s47, {(8+8*k+p)*16384}\nbuffer_load_dwordx4 v4, s[20:23], s43 offen lds")
    a(f"""
    s_lshl_b32 s43, s17, 3
    s_lshl_b32 s44, s19, 1
    s_add_u32 s43, s43, s44
    s_add_u32 s43, s43, s35
    s_lshl_b32 s44, s43, 16
    s_lshl_b32 s45, s34, 15
    s_add_u32 s44, s44, s45
    s_add_u32 s48, s44, {hex(O_OFF)}
    """)
    for g in range(1, 8): a(f"s_add_u32 s{48+g}, s48, {g*4096}")
    a(f"""
    s_lshl_b32 s43, s43, 15
    s_lshl_b32 s44, s3, 7
    s_add_u32 s43, s43, s44
    s_lshl_b32 s44, s34, 5
    s_add_u32 s43, s43, s44
    s_lshl_b32 s44, s16, 12
    s_add_u32 s44, s44, {XCH}
    v_add_u32 v4, s44, v1
    v_xor_b32 v5, 0x2000, v4
    s_waitcnt vmcnt(0)
    """)
    stamp(a, "hBBw")
    a("s_barrier")
    stamp(a, "hBB")
    if STAMPS: a("s_mov_b32 s101, 0x100000")
    def oload(g): return [f"buffer_load_dwordx4 {vr(OF+16*g+4*n,4)}, v1, s[28:31], s{48+g} offen offset:{n*1024} sc1" for n in range(4)]
    def check(g):
        f = OF + 16 * g
        L = [f"v_max3_u32 v11, v{f}, v{f+1}, v{f+2}"]
        for i in range(6): L.append(f"v_max3_u32 v11, v11, v{f+3+2*i}, v{f+4+2*i}")
        L += [f"v_max_u32 v11, v11, v{f+15}", "v_cmp_eq_u32 vcc, -1, v11"]
        return L
    def wreads(s):
        k, p = divmod(s - 8, 8)
        f = WF + 8 * (s & 1)
        return [f"ds_read_b64_tr_b16 {vr(f+4*c+2*e,2)}, v{(6 if k == 2 else 8)+c} offset:{(k&1)*32768+p*2048+e*512}" for c in range(2) for e in range(2)]
    for g in range(4):
        for x in oload(g): a(x)
    a("s_waitcnt vmcnt(12)")
    for x in check(0): a(x)
    a("s_cbranch_vccnz H_RETRY0\nH_GO0:")
    stamp(a, "hG0")
    for s in range(32):
        g = s >> 2
        w = WR + 8 * s if s < 8 else WF + 8 * (s & 1)
        M = [f"v_mfma_f32_32x32x16_bf16 {vr(ACC+16*c,16)}, {vr(w+4*c,4)}, {vr(OF+4*s,4)}, {vr(ACC+16*c,16) if s else 0}" for c in range(2)]
        if s >= 8: a("s_waitcnt lgkmcnt(0)")
        a(M[0])
        if 7 <= s < 31:
            for x in wreads(s + 1): a(x)
        if g < 4 and s % 4 < 2:
            for x in oload(g + 4)[2 * (s % 4):2 * (s % 4) + 2]: a(x)
        if s % 4 == 3 and g < 7:
            a(f"s_waitcnt vmcnt({min(12, 4 * (6 - g))})")
            for x in check(g + 1)[:5]: a(x)
        a(M[1])
        if s % 4 == 3 and g < 7:
            for x in check(g + 1)[5:]: a(x)
            a(f"s_cbranch_vccnz H_RETRY{g+1}\nH_GO{g+1}:")
            stamp(a, f"hG{g+1}")
    stamp(a, "hMF")
    a("s_cmp_eq_u32 s34, 0\ns_cbranch_scc1 H_B0\ns_nop 8")
    def xchg(keep):
        give = ACC + 16 * (1 - keep); kp = ACC + 16 * keep
        for i in range(4):
            for r in range(0, 4, 2): a(f"v_pk_mul_f32 {vr(give+4*i+r,2)}, {vr(give+4*i+r,2)}, v[12:13] op_sel:[0,1]")
            a(f"ds_write_b128 v4, {vr(give+4*i,4)} offset:{i*1024}")
        a("s_waitcnt lgkmcnt(0)\ns_barrier")
        for i in range(4): a(f"ds_read_b128 {vr(OF+4*i,4)}, v5 offset:{i*1024}")
        for i in range(4):
            a(f"s_waitcnt lgkmcnt({3-i})")
            for r in range(0, 4, 2): a(f"v_pk_fma_f32 {vr(kp+4*i+r,2)}, {vr(kp+4*i+r,2)}, v[12:13], {vr(OF+4*i+r,2)} op_sel:[0,1,0]")
            for r in range(2): a(f"v_cvt_pk_bf16_f32 v{WF+2*i+r}, v{kp+4*i+2*r}, v{kp+4*i+2*r+1}")
    xchg(1)
    a("s_branch H_ST\nH_B0:\ns_nop 9")
    xchg(0)
    a(f"""
    H_ST:
    """)
    stamp(a, "hXC"); stamp(a, "hnSPIN")
    a(f"""
    buffer_store_dwordx4 {vr(WF,4)}, v10, s[24:27], s43 offen
    buffer_store_dwordx4 {vr(WF+4,4)}, v10, s[24:27], s43 offen offset:16
    """)
    if STAMPS: a("s_add_u32 s16, s16, 4")
    stamp_flush(a)
    a("s_endpgm")
    for g in range(8):
        a(f"H_RETRY{g}:")
        spin(a)
        for gg in range(g, min(g + 4, 8)):
            for x in oload(gg): a(x)
        a("s_waitcnt vmcnt(0)")
        for x in check(g): a(x)
        a(f"s_cbranch_vccnz H_RETRY{g}\ns_branch H_GO{g}")

def main(out):
    ref = open(f"cdna_kernels/{NAME}.s.ref").read().split("\n")
    hdr = [l for l in ref if l.startswith(";") and "@launch" not in l and "Override launch" not in l and "grid=ceil" not in l]
    lab = NAME + "_kernel"
    a = Asm()
    a(f".globl {lab}\n.p2align 8\n.type {lab},@function\n{lab}:")
    prologue(a); compute_phase1(a); attention(a); helper(a)
    desc = f""".p2align 6
.amdhsa_kernel {lab}
  .amdhsa_next_free_vgpr 256
  .amdhsa_next_free_sgpr 102
  .amdhsa_accum_offset 256
  .amdhsa_group_segment_fixed_size 0
  .amdhsa_kernarg_size 80
  .amdhsa_user_sgpr_count 2
  .amdhsa_user_sgpr_kernarg_segment_ptr 1
  .amdhsa_system_sgpr_workgroup_id_x 1
.end_amdhsa_kernel
"""
    if STAMPS: hdr = hdr + ["; stamps " + " | ".join(SETS[OPT["stamps"]])]
    s = "\n".join(hdr + ["; @launch grid=(256,1,1) block=(512,1,1) lds=163840"]) + '\n.amdgcn_target "amdgcn-amd-amdhsa--gfx950"\n.text\n' + a.text()
    s += '.section .rodata,"a"\n' + desc
    open(out, "w").write(s)

if __name__ == "__main__":
    args = [x for x in sys.argv[1:] if not x.startswith("--")]
    main(args[0] if args else f"cdna_kernels/{NAME}.s")
```

```python
import sys
NAME = "gated_mix__softmax_full_mha__softmax_full_mha__prompt"
O_OFF, F1_OFF, F2_OFF = 8 << 20, 12 << 20, (12 << 20) + (128 << 10)
WS_BYTES = 13 << 20
QSCALE = 0x3EB8AA3B
LOG2E = 0x3FB8AA3B
SLOT = 45056
QX, STG, GP, LANDED, REL, XCH, TAGL = 135168, 131072, 155648, 156672, 157696, 131072, 158720
OPT = {x[2:].split("=")[0]: (x.split("=")[1] if "=" in x else True) for x in sys.argv[1:] if x.startswith("--")}
STAMPS = "stamps" in OPT
STAMP_OFF = 20 << 20
SREG = [96, 84, 86, 88, 90, 92, 94, 98]

class Asm:
    def __init__(self): self.L = []
    def __call__(self, s):
        for x in s.strip("\n").split("\n"):
            x = x.strip()
            if not x: continue
            self.L.append(x if x.endswith(":") or x.startswith(".") else "    " + x)
    def text(self): return "\n".join(self.L) + "\n"

def vr(a, n): return f"v[{a}:{a+n-1}]"
def srd(a, d, lo, nbytes):
    a(f"s_mov_b32 s{d}, s{lo}\ns_mov_b32 s{d+1}, s{lo+1}\ns_mov_b32 s{d+2}, {hex(nbytes)}\ns_mov_b32 s{d+3}, 0x00020000")
SETS = {True: ("aB0 aMF aST aEND cST cEND", "hB0 hP1 hBL1 hBL7 hBBw hBB"),
        "p1": ("aB0 aB2 aB4 aB6 aB7 aMF", "hB0 hB1 hB3 hB5 hB7 hP1"),
        "ho": ("aMF aP1 aST anSPIN cST cEND", "hP1 hPOLL1 hBL1 hBL2 hBL3 hBL4"),
        "tail": ("aEND aCHK aSTO aBB aX anSPIN", "hBB hG0 hG7 hMF hXC hnSPIN")}
PROBE = OPT.get("probe")
def probe_end(a, kind):
    if not PROBE: return
    a("s_waitcnt vmcnt(0) lgkmcnt(0)")
    if PROBE == "none" or (PROBE[0] != kind and not (PROBE == "cyc" and kind == "a")): a("s_mov_b32 s96, 6000")
    elif PROBE == "cyc": a("s_sub_u32 s96, s96, s94\ns_lshr_b32 s96, s96, 3\ns_add_u32 s96, s96, 6000")
    else:
        if PROBE[1:] == "fin": a("s_memrealtime s[96:97]\ns_waitcnt lgkmcnt(0)")
        a("s_sub_u32 s96, s96, s100\ns_lshl_b32 s96, s96, 2\ns_add_u32 s96, s96, 6000")
    a(f"PROBE_{kind}:\ns_memrealtime s[98:99]\ns_waitcnt lgkmcnt(0)\ns_sub_u32 s98, s98, s100\ns_cmp_lt_i32 s98, s96\ns_sleep 1\ns_cbranch_scc1 PROBE_{kind}")
def stamp(a, name):
    if PROBE == name: a("s_memrealtime s[96:97]")
    if PROBE == "cyc" and name in ("cST", "cEND"): a(f"s_memtime s[{94 if name == 'cST' else 96}:{95 if name == 'cST' else 97}]")
    if not STAMPS: return
    if name in (0, 7): slot = name
    else:
        names = [x.split() for x in SETS[OPT["stamps"]]]
        names = names[1] if name[0] == "h" else names[0]
        if name not in names: return
        slot = names.index(name) + 1
    if str(name)[1:] == "nSPIN":
        a(f"s_sub_u32 s{SREG[slot]}, 0x100000, s101"); return
    if str(name)[1:] == "zSPIN": return
    a(f"{'s_memtime' if str(name)[0] == 'c' else 's_memrealtime'} s[{SREG[slot]}:{SREG[slot]+1}]")
def stamp_flush(a):
    if not STAMPS: return
    a("s_waitcnt vmcnt(0)")
    stamp(a, 7)
    a(f"""
    s_load_dwordx2 s[80:81], s[0:1], 72
    s_waitcnt lgkmcnt(0)
    s_mov_b32 s82, {hex(STAMP_OFF + (1 << 20))}
    s_mov_b32 s83, 0x00020000
    s_mov_b64 exec, 1
    s_lshl_b32 s78, s2, 4
    s_add_u32 s78, s78, s16
    s_lshl_b32 s79, s78, 5
    s_add_u32 s79, s79, {hex(STAMP_OFF)}
    v_mov_b32 v8, 0
    """)
    for i in range(8): a(f"v_mov_b32 v{16+i}, s{SREG[i]}")
    a("""
    buffer_store_dwordx4 v[16:19], v8, s[80:83], s79 offen
    buffer_store_dwordx4 v[20:23], v8, s[80:83], s79 offen offset:16
    s_waitcnt vmcnt(0)
    """)

SB, OA, QF, KF, VF = 16, 80, 144, 160, 168
RC = 192
POS = (2, 7, 11)
def spin(a):
    a("s_sub_u32 s101, s101, 1\ns_cbranch_scc1 K_END")

def prologue(a):
    a("""
    s_cmp_ge_u32 s2, 256
    s_cbranch_scc1 K_END
    """)
    stamp(a, 0)
    a("""
    s_load_dwordx4 s[4:7], s[0:1], 0
    s_load_dwordx2 s[8:9], s[0:1], 32
    s_load_dwordx2 s[10:11], s[0:1], 48
    s_load_dwordx4 s[12:15], s[0:1], 64
    v_lshrrev_b32 v1, 6, v0
    v_and_b32 v0, 63, v0
    v_readfirstlane_b32 s16, v1
    s_and_b32 s19, s2, 7
    s_lshr_b32 s3, s2, 3
    s_and_b32 s17, s19, 1
    s_lshl_b32 s17, s17, 2
    s_and_b32 s18, s3, 3
    s_add_u32 s17, s17, s18
    s_lshr_b32 s3, s3, 2
    s_lshr_b32 s19, s19, 1
    s_lshl_b32 s18, s19, 3
    s_add_u32 s18, s18, s3
    s_cmp_ge_u32 s18, 16
    s_waitcnt lgkmcnt(0)
    s_cselect_b32 s6, s8, s6
    s_cselect_b32 s7, s9, s7
    """)
    srd(a, 28, 14, WS_BYTES)
    a("s_mov_b32 s101, 0x100000")
    a("s_cmp_ge_u32 s16, 4\ns_cbranch_scc1 HELPER")

def compute_phase1(a):
    ACC = [QF, SB, 184, 200, 216, 232]
    FR = [32, 52]
    XA = 248
    a("""
    s_or_b32 s32, s2, s16
    s_cmp_lg_u32 s32, 0
    s_cbranch_scc1 C_NOTAG
    s_memrealtime s[32:33]
    s_mov_b32 s14, 256
    s_mov_b32 s15, 0x00020000
    v_mov_b32 v1, 0
    s_waitcnt lgkmcnt(0)
    s_or_b32 s32, s32, 1
    v_mov_b32 v2, s32
    v_mov_b32 v3, s33
    s_mov_b64 exec, 1
    buffer_store_dwordx2 v[2:3], v1, s[12:15], 0 offen sc1
    s_mov_b64 exec, -1
    C_NOTAG:
    """)
    a(f"""
    s_and_b32 s33, s16, 1
    v_and_b32 v5, 31, v0
    v_lshrrev_b32 v6, 5, v0
    v_bfe_u32 v7, v0, 1, 3
    v_lshlrev_b32 v9, 7, v5
    s_lshl_b32 s34, s16, 13
    v_add_u32 v9, s34, v9
    """)
    for s in range(4):
        a(f"v_add_u32 v10, {2*s}, v6\nv_xor_b32 v10, v10, v7\nv_lshl_add_u32 v{XA+s}, v10, 4, v9\nv_add_u32 v{XA+4+s}, {2*SLOT}, v{XA+s}")
    a(f"""
    v_bfe_u32 v9, v0, 2, 2
    v_lshl_add_u32 v9, v6, 3, v9
    v_lshlrev_b32 v9, 6, v9
    v_and_b32 v10, 3, v0
    v_lshl_add_u32 v9, v10, 3, v9
    v_bfe_u32 v10, v0, 4, 1
    v_lshl_add_u32 v1, v10, 5, v9
    v_add_u32 v1, 0x8000, v1
    v_add_u32 v2, {2*SLOT}, v1
    s_lshl_b32 s35, s33, 5
    v_xor_b32 v3, s35, v1
    v_add_u32 v4, {2*SLOT}, v3
    """)
    a(f"""
    s_lshl_b32 s35, s16, 8
    s_add_u32 s35, s35, {REL}
    v_lshlrev_b32 v13, 2, v0
    v_add_u32 v13, s35, v13
    v_mov_b32 v14, 0
    ds_write_b32 v13, v14
    v_and_b32 v11, 3, v0
    v_lshlrev_b32 v11, 8, v11
    v_add_u32 v11, {LANDED}, v11
    v_mov_b32 v8, 0xdddddddd
    v_and_b32 v9, 27, v5
    v_mov_b32 v10, 0x3f803f80
    v_cmp_eq_u32 vcc, 16, v9
    s_mov_b32 s36, 0x0000ffff
    s_mov_b32 s37, 0x0000ffff
    v_cndmask_b32 v12, 0, v10, vcc
    v_mov_b32 v14, 1
    v_lshlrev_b32 v15, 4, v0
    v_and_b32 v9, 0x33, v0
    v_bfe_u32 v10, v0, 2, 1
    v_lshl_or_b32 v9, v10, 3, v9
    v_bfe_u32 v10, v0, 3, 1
    v_lshl_or_b32 v9, v10, 2, v9
    v_lshlrev_b32 v9, 4, v9
    s_lshl_b32 s35, s33, 11
    v_add_u32 v10, s35, v9
    v_mov_b32 v9, v10
    """)
    for r in range(VF, VF + 16): a(f"v_mov_b32 v{r}, v12")
    for r in range(OA, OA + 64): a(f"v_mov_b32 v{r}, 0")
    for r in range(SB + 56, SB + 64): a(f"v_mov_b32 v{r}, 0")
    a(f"""
    v_and_b32 v7, 15, v0
    v_lshlrev_b32 v7, 4, v7
    v_lshl_add_u32 v7, v6, 9, v7
    v_bfe_u32 v6, v0, 4, 1
    v_lshl_add_u32 v6, v6, 11, v7
    v_add_u32 v6, s34, v6
    v_add_u32 v5, s34, v15
    s_lshl_b32 s35, s16, 11
    s_add_u32 s35, s35, {QX}
    v_add_u32 v7, s35, v15
    """)
    a(f"""
    s_lshl_b32 s42, s18, 18
    s_lshl_b32 s43, s17, 15
    s_add_u32 s42, s42, s43
    s_add_u32 s43, s42, 4096
    s_lshl_b32 s44, s18, 12
    s_lshl_b32 s45, s16, 7
    s_add_u32 s44, s44, s45
    s_add_u32 s44, s44, {hex(F1_OFF)}
    """)
    if "notouch" not in OPT:
        a(f"""
        v_lshlrev_b32 v{KF}, 9, v0
        s_mov_b64 exec, 0xff
        buffer_load_dword v{KF+1}, v{KF}, s[28:31], s44 offen sc1
        s_mov_b64 exec, 1
        buffer_load_dword v{KF+2}, v5, s[28:31], s42 offen sc1
        s_mov_b64 exec, -1
        """)
    def reads(c, s, buf):
        f = FR[buf]; slot = c % 3
        hi = slot == 2
        so = 0 if hi else slot * SLOT
        xr = XA + s + (4 if hi else 0)
        w = 2 if hi else 1; wq = 4 if hi else 3
        wo = so + s * 1024
        R = [f"ds_read_b128 {vr(f,4)}, v{xr} offset:{so}"]
        R += [f"ds_read_b64_tr_b16 {vr(f+12+2*e,2)}, v{w} offset:{wo+4096+e*256}" for e in range(2)]
        R += [f"ds_read_b128 {vr(f+4,4)}, v{xr} offset:{so+4096}"]
        R += [f"ds_read_b64_tr_b16 {vr(f+16+2*e,2)}, v{w} offset:{wo+8192+e*256}" for e in range(2)]
        R += [f"ds_read_b64_tr_b16 {vr(f+8+2*e,2)}, v{wq} offset:{wo+e*256}" for e in range(2)]
        return R
    a("s_waitcnt lgkmcnt(0)\ns_barrier")
    stamp(a, "aB0")
    for r in reads(0, 0, 0): a(r)
    for n in range(32):
        c, s = divmod(n, 4)
        f = FR[n & 1]
        M = []
        for part in (1, 2, 0):
            for b in range(2):
                d = ACC[2 * part + b]
                x = vr(f + 4 * b, 4); w = vr(f + 8 + 4 * part, 4)
                A, B = (w, x) if part < 2 else (x, w)
                M.append(f"v_mfma_f32_32x32x16_bf16 {vr(d,16)}, {A}, {B}, {vr(d,16) if n else 0}")
        R = reads(*divmod(n + 1, 4), (n + 1) & 1) if n < 31 else []
        a("s_waitcnt lgkmcnt(0)")
        a(M[0])
        if s == 3 and n < 31:
            a("s_barrier"); stamp(a, f"aB{c+1}")
        grp = [R[0:3], R[3:6], R[6:8], [], []]
        for i in range(5):
            for r in grp[i]: a(r)
            a(M[i + 1])
    stamp(a, "aMF")
    a(f"s_mov_b32 s40, {hex(QSCALE)}\ns_mov_b32 s41, s40\ns_waitcnt vmcnt(0)\ns_nop 4")
    for b in range(2):
        d = ACC[2 + b]
        for hd in range(2):
            for i in range(4): a(f"v_cvt_pk_bf16_f32 v{d+8*hd+i}, v{d+8*hd+2*i}, v{d+8*hd+2*i+1}")
            a(f"buffer_store_dwordx4 {vr(d+8*hd,4)}, v5, s[28:31], s{42+b} offen offset:{hd*2048} sc1")
            a(f"ds_write_b128 v5, {vr(d+8*hd,4)} offset:{b*4096 + hd*2048}")
    for b in range(2):
        d = ACC[4 + b]
        for m in range(2):
            for i in range(4): a(f"v_cvt_pk_bf16_f32 v{d+8*m+i}, v{d+8*m+2*i}, v{d+8*m+2*i+1}")
            a(f"buffer_store_dwordx4 {vr(d+8*m,4)}, v6, s[28:31], s{42+b} offen offset:{1024 + m*256} sc1")
            a(f"ds_write_b128 v6, {vr(d+8*m,4)} offset:{b*4096 + 1024 + m*256}")
    for b in range(2):
        d = ACC[b]
        for r in range(8, 16, 2): a(f"v_pk_mul_f32 {vr(d+r,2)}, {vr(d+r,2)}, s[40:41]")
        for i in range(4): a(f"v_cvt_pk_bf16_f32 v{KF+4*b+i}, v{d+8+2*i}, v{d+8+2*i+1}")
        a(f"ds_write_b128 v7, {vr(KF+4*b,4)} offset:{b*1024}")
    for b in range(2):
        d = ACC[b]
        for r in range(0, 8, 2): a(f"v_pk_mul_f32 {vr(d+r,2)}, {vr(d+r,2)}, s[40:41]")
        for i in range(4): a(f"v_cvt_pk_bf16_f32 v{QF+4*b+i}, v{d+2*i}, v{d+2*i+1}")
    a(f"""
    v_xor_b32 v7, 0x800, v7
    v_mov_b32 v1, {TAGL}
    s_lshl_b32 s45, s17, 9
    v_mov_b32 v4, s45
    v_cmp_eq_u32 vcc, 0, v0
    v_mov_b32 v2, 0x80000000
    s_nop 0
    v_cndmask_b32 v4, v2, v4, vcc
    s_waitcnt lgkmcnt(0)
    s_barrier
    """)
    stamp(a, "aP1")

def attention(a):
    a(f"""
    ds_read_b128 {vr(KF,4)}, v9
    ds_read_b128 {vr(QF+8,4)}, v7
    ds_read_b128 {vr(QF+12,4)}, v7 offset:1024
    s_mov_b64 exec, s[36:37]
    ds_read_b128 {vr(VF,4)}, v9 offset:1024
    ds_read_b128 {vr(VF+4,4)}, v9 offset:1280
    s_mov_b64 exec, -1
    ds_read_b64 v[2:3], v1
    s_mov_b32 s38, 0
    s_mov_b32 s39, 1
    s_mov_b32 s40, 8
    s_waitcnt lgkmcnt(5)
    """)
    for q in range(2):
        a(f"v_mfma_f32_32x32x16_bf16 {vr(SB+16*q,16)}, {vr(KF,4)}, {vr(QF+4*q,4)}, 0")
    a("s_waitcnt lgkmcnt(0)\ns_nop 10")
    if PROBE: a("v_readfirstlane_b32 s100, v2")
    stamp(a, "aST"); stamp(a, "cST")
    a(".p2align 6\nA_LOOP:")
    for j in range(8):
        kb = KF + 4 * (j & 1); kbn = KF + 4 * ((j + 1) & 1)
        vb = VF + 8 * (j & 1); vbn = VF + 8 * ((j + 1) & 1)
        o = ((j + 1) % 8) * 4096
        post = {(0, 0): ["s_mov_b64 exec, s[36:37]", f"ds_read_b128 {vr(vbn,4)}, v9 offset:{o+1024}",
                         f"ds_read_b128 {vr(vbn+4,4)}, v9 offset:{o+1280}", "s_mov_b64 exec, -1"],
                (0, 2): [f"ds_read_b128 {vr(kbn,4)}, v9 offset:{o}"],
                (2, 0): ["s_waitcnt lgkmcnt(0)"]}
        fj, fq = divmod(int(OPT.get("fpos", 6)), 4)
        if j == fj:
            post[(fq, 0)] = post.get((fq, 0), []) + ["s_waitcnt vmcnt(0)"]
            post[(fq, 1)] = ["buffer_store_dwordx2 v[2:3], v4, s[28:31], s44 offen sc1"]
        if j == 6:
            post[(1, 0)] = ["s_add_u32 s38, s38, 0x8000", "s_and_b32 s38, s38, 0x1ffff"]
            post[(2, 2)] = ["ds_add_u32 v13, v14"]
            post[(3, 0)] = ["v_add_u32 v9, s38, v10"]
        if j == 7:
            post[(1, 0)] = ["s_cbranch_vccnz A_WAIT", "A_BACK:"] + post[(0, 2)] + post[(0, 0)]
            post[(0, 0)] = ["ds_read_b32 v12, v11"]
            post[(0, 2)] = ["s_waitcnt lgkmcnt(0)", "v_cmp_gt_u32 vcc, s39, v12"]
            post[(2, 2)] = ["s_add_u32 s39, s39, 1", "s_min_u32 s39, s39, 7"]
            post[(3, 0)] = ["s_sub_u32 s40, s40, 1", "s_cmp_lg_u32 s40, 0"]
        for q in range(4):
            n = 4 * j + q
            cur = SB + 16 * (n % 4); prev = SB + 16 * ((n - 1) % 4); nxt = SB + 16 * ((n + 2) % 4)
            oprev = OA + 16 * ((q - 1) % 4); ocur = OA + 16 * q
            vprev = (vbn if q == 0 else vb) + 4
            q2 = (q + 2) % 4; k2 = kb if q < 2 else kbn
            M = [f"v_smfmac_f32_32x32x32_bf16 {vr(oprev,16)}, {vr(vprev,4)}, {vr(prev+8,8)}, v8",
                 f"v_mfma_f32_32x32x16_bf16 {vr(nxt,16)}, {vr(k2,4)}, {vr(QF+4*q2,4)}, 0",
                 f"v_smfmac_f32_32x32x32_bf16 {vr(ocur,16)}, {vr(vb,4)}, {vr(cur,8)}, v8"]
            for e in range(16):
                for m in range(3):
                    if e == POS[m]:
                        a(M[m])
                        for x in post.get((q, m), []): a(x)
                a(f"v_exp_f32 v{cur+e}, v{cur+e}")
    a(f"""
    s_cbranch_scc1 A_LOOP
    s_nop 0
    v_smfmac_f32_32x32x32_bf16 {vr(OA+48,16)}, {vr(VF+12,4)}, {vr(SB+56,8)}, v8
    """)
    stamp(a, "aEND"); stamp(a, "cEND")
    a(f"""
    s_lshl_b32 s42, s17, 3
    s_lshl_b32 s43, s16, 1
    s_add_u32 s42, s42, s43
    s_lshl_b32 s42, s42, 16
    s_lshl_b32 s43, s18, 1
    s_add_u32 s43, s43, s33
    s_lshl_b32 s43, s43, 10
    s_add_u32 s42, s42, s43
    s_add_u32 s42, s42, {hex(O_OFF)}
    s_add_u32 s43, s42, 0x10000
    s_xor_b32 s44, s42, 0x20000
    s_xor_b32 s45, s43, 0x20000
    s_mov_b32 s46, 0x17800000
    s_mov_b32 s47, 0x67800000
    v_mov_b32 v2, 0
    v_mov_b32 v3, 0
    v_min3_f32 v4, v{OA+8}, v{OA+24}, v{OA+40}
    v_max3_f32 v5, v{OA+8}, v{OA+24}, v{OA+40}
    """)
    for q in range(4):
        for r in range(0, 8, 2): a(f"v_pk_fma_f32 v[2:3], {vr(OA+16*q+r,2)}, 0, v[2:3]")
    a(f"""
    v_min_f32 v4, v4, v{OA+56}
    v_max_f32 v5, v5, v{OA+56}
    v_add_f32 v2, v2, v3
    v_cmp_lt_f32 s[48:49], s46, v4
    v_cmp_gt_f32 s[50:51], s47, v5
    v_cmp_eq_f32 vcc, 0, v2
    """)
    for q in range(4): a(f"v_rcp_f32 v{RC+2*q}, v{OA+16*q+8}")
    a("""
    s_and_b64 s[48:49], s[48:49], s[50:51]
    s_and_b64 s[48:49], s[48:49], vcc
    s_cmp_eq_u64 s[48:49], -1
    s_cbranch_scc0 A_SLOW
    """)
    stamp(a, "aCHK")
    def norm(q, clamp):
        for r in range(0, 8, 2):
            a(f"v_pk_mul_f32 {vr(OA+16*q+r,2)}, {vr(OA+16*q+r,2)}, {vr(RC+2*q,2)} op_sel_hi:[1,0]")
        for i in range(4): a(f"v_cvt_pk_bf16_f32 v{SB+4*q+i}, v{OA+16*q+2*i}, v{OA+16*q+2*i+1}")
        if clamp:
            for i in range(4): a(f"v_min_u32 v{SB+4*q+i}, -2, v{SB+4*q+i}")
        a(f"buffer_store_dwordx4 {vr(SB+4*q,4)}, v15, s[28:31], s{42+q} offen sc1")
    for q in range(4): norm(q, False)
    a("A_DONE:")
    if "drain" in OPT: a("s_waitcnt vmcnt(0)")
    stamp(a, "aSTO")
    a("s_barrier")
    stamp(a, "aBB")
    a("s_barrier")
    stamp(a, "aX"); stamp(a, "anSPIN")
    stamp_flush(a); probe_end(a, "a")
    a("K_END:\ns_endpgm")
    a("A_WAIT:")
    spin(a)
    a("""
    ds_read_b32 v12, v11
    s_waitcnt lgkmcnt(0)
    v_cmp_gt_u32 vcc, s39, v12
    s_cbranch_vccnz A_WAIT
    s_branch A_BACK
    """)
    a(f"""
    A_SLOW:
    s_lshl_b32 s38, s18, 18
    s_mov_b32 s40, 64
    """)
    for q in range(4): a(f"v_mov_b32 v{184+q}, 0xff800000")
    a(f"""
    A_MAXLOOP:
    buffer_load_dwordx4 {vr(KF,4)}, v10, s[28:31], s38 offen sc1
    s_add_u32 s38, s38, 4096
    s_waitcnt vmcnt(0)
    """)
    for q in range(4): a(f"v_mfma_f32_32x32x16_bf16 {vr(SB+16*q,16)}, {vr(KF,4)}, {vr(QF+4*q,4)}, 0")
    a("s_nop 11")
    for q in range(4):
        for i in range(8): a(f"v_max3_f32 v{184+q}, v{184+q}, v{SB+16*q+2*i}, v{SB+16*q+2*i+1}")
    a("s_sub_u32 s40, s40, 1\ns_cmp_lg_u32 s40, 0\ns_cbranch_scc1 A_MAXLOOP")
    for q in range(4): a(f"v_mov_b32 v{188+q}, v{184+q}")
    a("s_nop 1")
    for q in range(4): a(f"v_permlane32_swap_b32 v{184+q}, v{188+q}")
    a("s_nop 1")
    for q in range(4): a(f"v_max_f32 v{184+q}, v{184+q}, v{188+q}")
    for r in range(OA, OA + 64): a(f"v_mov_b32 v{r}, 0")
    a(f"""
    s_lshl_b32 s38, s18, 18
    s_mov_b32 s40, 64
    A_EXPLOOP:
    buffer_load_dwordx4 {vr(KF,4)}, v10, s[28:31], s38 offen sc1
    s_mov_b64 exec, s[36:37]
    buffer_load_dwordx4 {vr(VF,4)}, v10, s[28:31], s38 offen offset:1024 sc1
    buffer_load_dwordx4 {vr(VF+4,4)}, v10, s[28:31], s38 offen offset:1280 sc1
    s_mov_b64 exec, -1
    s_add_u32 s38, s38, 4096
    s_waitcnt vmcnt(0)
    """)
    for q in range(4): a(f"v_mfma_f32_32x32x16_bf16 {vr(SB+16*q,16)}, {vr(KF,4)}, {vr(QF+4*q,4)}, 0")
    a("s_nop 11")
    for q in range(4):
        for e in range(16): a(f"v_sub_f32 v{SB+16*q+e}, v{SB+16*q+e}, v{184+q}")
        for e in range(16): a(f"v_exp_f32 v{SB+16*q+e}, v{SB+16*q+e}")
        a("s_nop 1")
        a(f"v_smfmac_f32_32x32x32_bf16 {vr(OA+16*q,16)}, {vr(VF,4)}, {vr(SB+16*q,8)}, v8")
        a(f"v_smfmac_f32_32x32x32_bf16 {vr(OA+16*q,16)}, {vr(VF+4,4)}, {vr(SB+16*q+8,8)}, v8")
    a("s_sub_u32 s40, s40, 1\ns_cmp_lg_u32 s40, 0\ns_cbranch_scc1 A_EXPLOOP\ns_nop 11")
    for q in range(4): a(f"v_rcp_f32 v{RC+2*q}, v{OA+16*q+8}")
    a("s_nop 0")
    for q in range(4): norm(q, True)
    a("s_branch A_DONE")

def helper(a):
    GW = 128
    a("""
    HELPER:
    s_sub_u32 s16, s16, 4
    s_lshl_b32 s8, s16, 5
    s_add_u32 s10, s10, s8
    s_addc_u32 s11, s11, 0
    """)
    stamp(a, "hARG")
    ROT = int(OPT.get("rot", 6))
    a(f"""
    s_lshr_b32 s9, s2, 3
    s_and_b32 s9, s9, 3
    s_lshl_b32 s9, s9, 1
    s_add_u32 s9, s9, s3
    s_and_b32 s9, s9, {ROT}
    """)
    for c in range(8):
        if ROT: a(f"s_add_u32 s8, s9, {c}\ns_and_b32 s8, s8, 7\ns_lshl_b32 s8, s8, 7\ns_load_dwordx8 s[{32+8*c}:{39+8*c}], s[10:11], s8")
        else: a(f"s_load_dwordx8 s[{32+8*c}:{39+8*c}], s[10:11], {c*128}")
    srd(a, 20, 4, 2048 * 1024)
    srd(a, 24, 6, 512 * 3072)
    a("""
    s_mov_b32 s14, 256
    s_mov_b32 s15, 0x00020000
    v_lshrrev_b32 v1, 3, v0
    v_and_b32 v2, 7, v0
    v_lshrrev_b32 v3, 4, v0
    s_and_b32 s4, s16, 1
    s_lshl_b32 s4, s4, 2
    v_add_u32 v4, s4, v3
    v_xor_b32 v4, v4, v2
    v_lshlrev_b32 v4, 4, v4
    v_lshl_add_u32 v4, v1, 10, v4
    v_lshrrev_b32 v1, 2, v0
    v_mul_u32_u24 v5, 3072, v1
    v_and_b32 v2, 3, v0
    v_lshl_add_u32 v5, v2, 4, v5
    s_lshl_b32 s4, s17, 18
    s_lshl_b32 s5, s16, 13
    s_add_u32 s4, s4, s5
    s_mul_i32 s5, s16, 49152
    s_and_b32 s6, s18, 15
    s_lshl_b32 s6, s6, 6
    s_add_u32 s5, s5, s6
    s_lshl_b32 s6, s16, 10
    """)
    def chunk(c):
        so = (c % 3) * SLOT
        a(f"s_add_u32 s8, s9, {c}\ns_and_b32 s8, s8, 7\ns_mul_i32 s10, s8, {64*3072}\ns_add_u32 s10, s10, s5\ns_lshl_b32 s8, s8, 7\ns_add_u32 s8, s8, s4")
        for i in range(8):
            if i < 3:
                part = (1, 2, 0)[i]
                a(f"s_add_u32 m0, s6, {so + 32768 + part*4096}")
                a(f"s_add_u32 s7, s10, {part*1024}")
                a("buffer_load_dwordx4 v5, s[24:27], s7 offen lds")
            a(f"s_add_u32 m0, s6, {so + i*4096}")
            a(f"s_add_u32 s7, s8, {i*32768}")
            a("buffer_load_dwordx4 v4, s[20:23], s7 offen lds")
    EARLY = "late0" not in OPT
    for c in range(2 if EARLY else 3):
        chunk(c); stamp(a, f"hC{c}")
    a(f"""
    s_lshl_b32 s7, s16, 8
    s_add_u32 s8, s7, {LANDED}
    v_lshlrev_b32 v13, 2, v0
    v_add_u32 v12, s8, v13
    v_mov_b32 v6, 0
    ds_write_b32 v12, v6
    s_add_u32 s8, s7, {GP}
    v_add_u32 v13, s8, v13
    v_bfe_u32 v1, v0, 1, 3
    s_lshl_b32 s8, s16, 1
    v_xor_b32 v1, s8, v1
    v_lshlrev_b32 v1, 4, v1
    v_lshl_add_u32 v1, v0, 7, v1
    s_lshl_b32 s8, s19, 13
    v_add_u32 v7, s8, v1
    v_xor_b32 v8, 16, v7
    v_add_u32 v9, {2*SLOT}, v7
    v_add_u32 v10, {2*SLOT}, v8
    v_mov_b32 v11, 0
    s_waitcnt lgkmcnt(0)
    """)
    for i in range(64): a(f"v_mov_b32 v{GW+i}, s{32+i}")
    def gate(c):
        hi = c % 3 == 2
        so = 0 if hi else (c % 3) * SLOT
        a(f"ds_read_b128 v[16:19], v{9 if hi else 7} offset:{so}\nds_read_b128 v[20:23], v{10 if hi else 8} offset:{so}")
        a("s_waitcnt lgkmcnt(0)")
        for i in range(8): a(f"v_dot2_f32_bf16 v6, v{16+i}, v{GW+8*c+i}, v6")
    a(f"s_waitcnt vmcnt({11 if EARLY else 22})\ns_barrier")
    stamp(a, "hB0")
    for c in range(7):
        if (0 if EARLY else 1) <= c <= 5: chunk(c + 2)
        if c == 5: a("buffer_load_dwordx2 v[2:3], v11, s[12:15], 0 offen sc1")
        gate(c)
        a(f"s_waitcnt vmcnt({11 if c < 5 else 12 if c == 5 else 1})\ns_barrier")
        stamp(a, f"hB{c+1}")
    gate(7)
    a(f"""
    s_load_dwordx2 s[4:5], s[0:1], 16
    s_load_dwordx2 s[6:7], s[0:1], 40
    s_load_dwordx2 s[8:9], s[0:1], 56
    s_nop 0
    ds_write_b32 v13, v6
    H_TAG:
    s_waitcnt vmcnt(0)
    v_readfirstlane_b32 s32, v2
    v_readfirstlane_b32 s33, v3
    s_cmp_lg_u32 s32, 0
    s_cbranch_scc1 H_TAGOK
    """)
    spin(a)
    a(f"""
    buffer_load_dwordx2 v[2:3], v11, s[12:15], 0 offen sc1
    s_branch H_TAG
    H_TAGOK:
    s_lshr_b32 s34, s16, 1
    s_and_b32 s35, s16, 1
    s_cmp_eq_u32 s34, 1
    s_waitcnt lgkmcnt(0)
    s_cselect_b32 s4, s6, s4
    s_cselect_b32 s5, s7, s5
    """)
    srd(a, 20, 4, 512 * 1024)
    srd(a, 24, 8, 2048 * 1024)
    OF, WR, ACC, WF = 64, 192, 32, 16
    a(f"""
    v_lshlrev_b32 v1, 4, v0
    s_lshl_b32 s36, s16, 13
    v_add_u32 v4, s36, v1
    s_lshl_b32 s37, s18, 18
    s_add_u32 s37, s37, s36
    s_lshl_b32 s38, s17, 15
    s_add_u32 s38, s38, s37
    s_add_u32 s39, s38, 4096
    v_xor_b32 v5, s17, v0
    v_and_b32 v5, 7, v5
    v_lshlrev_b32 v5, 9, v5
    s_lshl_b32 s40, s18, 12
    s_lshl_b32 s41, s16, 7
    s_add_u32 s40, s40, s41
    s_add_u32 s40, s40, {hex(F1_OFF)}
    v_and_b32 v14, 3, v0
    v_lshlrev_b32 v14, 8, v14
    v_add_u32 v14, {REL}, v14
    v_mov_b32 v15, 1
    v_mov_b32 v16, {TAGL}
    ds_write_b64 v16, v[2:3]
    s_waitcnt lgkmcnt(0)
    s_barrier
    """)
    stamp(a, "hP1")
    a("s_mov_b32 s42, 0")
    def wait_rel(n, tag):
        a(f"H_REL{tag}:")
        spin(a)
        a(f"""
        ds_read_b32 v22, v14
        s_waitcnt lgkmcnt(0)
        v_cmp_gt_u32 vcc, {n}, v22
        s_cbranch_vccz H_RELOK{tag}
        s_sleep 4
        s_branch H_REL{tag}
        H_RELOK{tag}:
        """)
    def block(b):
        if b >= 4: wait_rel(b - 3, f"B{b}")
        a(f"""
        H_FLAG{b}:
        s_bitcmp1_b32 s42, {b}
        s_cbranch_scc1 H_FLAGOK{b}
        """)
        spin(a)
        a(f"""
        s_mov_b64 exec, 0xff
        buffer_load_dwordx2 v[20:21], v5, s[28:31], s40 offen sc1
        s_waitcnt vmcnt(0)
        v_cmp_eq_u64 vcc, s[32:33], v[20:21]
        s_mov_b64 exec, -1
        s_mov_b32 s42, vcc_lo
        s_branch H_FLAG{b}
        H_FLAGOK{b}:
        s_xor_b32 s43, s17, {b}
        s_lshl_b32 s43, s43, 15
        s_add_u32 s43, s43, s37
        """)
        stamp(a, f"hPOLL{b}")
        for hf in range(2):
            a(f"s_add_u32 m0, s36, {(b % 4) * 32768 + hf * 4096}")
            a(f"s_add_u32 s44, s43, {hf * 4096}")
            for n in range(4): a(f"buffer_load_dwordx4 v1, s[28:31], s44 offen offset:{n*1024} sc1 lds")
        a("s_waitcnt vmcnt(0)\nds_add_u32 v12, v15")
        stamp(a, f"hBL{b}")
    block(1)
    block(2); block(3)
    a(f"""
    s_lshl_b32 s43, s17, 3
    s_lshl_b32 s44, s16, 1
    s_add_u32 s43, s43, s44
    s_lshl_b32 s43, s43, 16
    s_lshl_b32 s44, s18, 11
    s_add_u32 s43, s43, s44
    s_add_u32 s43, s43, {hex(O_OFF)}
    s_add_u32 s44, s43, 0x10000
    v_mov_b32 v16, -1
    v_mov_b32 v17, -1
    v_mov_b32 v18, -1
    v_mov_b32 v19, -1
    buffer_store_dwordx4 v[16:19], v1, s[28:31], s43 offen sc1
    buffer_store_dwordx4 v[16:19], v1, s[28:31], s43 offen offset:1024 sc1
    buffer_store_dwordx4 v[16:19], v1, s[28:31], s44 offen sc1
    buffer_store_dwordx4 v[16:19], v1, s[28:31], s44 offen offset:1024 sc1
    """)
    block(4)
    a(f"""
    s_lshl_b32 s43, s17, 2
    s_add_u32 s44, s43, s16
    s_lshl_b32 s44, s44, 5
    s_add_u32 s44, s44, s18
    s_lshl_b32 s44, s44, 7
    s_add_u32 s44, s44, {hex(F2_OFF)}
    s_mov_b64 exec, 1
    buffer_store_dwordx2 v[2:3], v11, s[28:31], s44 offen sc1
    s_mov_b64 exec, -1
    s_add_u32 s43, s43, s19
    s_lshl_b32 s43, s43, 1
    s_add_u32 s43, s43, s34
    s_lshl_b32 s43, s43, 11
    s_add_u32 s45, s43, {hex(F2_OFF)}
    """)
    a(f"""
    v_and_b32 v6, 31, v0
    v_lshlrev_b32 v7, 2, v6
    s_lshl_b32 s43, s35, 7
    s_add_u32 s43, s43, {GP}
    v_add_u32 v7, s43, v7
    ds_read_b32 v16, v7
    ds_read_b32 v17, v7 offset:256
    ds_read_b32 v18, v7 offset:512
    ds_read_b32 v19, v7 offset:768
    s_cmp_eq_u32 s34, 0
    s_cselect_b32 s43, 1.0, -1.0
    s_cselect_b32 s44, 0, 1.0
    v_mov_b32 v20, s44
    s_waitcnt lgkmcnt(0)
    v_add_f32 v16, v16, v17
    v_add_f32 v18, v18, v19
    v_add_f32 v16, v16, v18
    v_mul_f32 v16, {hex(LOG2E | 0x80000000)}, v16
    v_exp_f32 v16, v16
    s_nop 0
    v_add_f32 v16, 1.0, v16
    v_rcp_f32 v16, v16
    s_nop 0
    v_fma_f32 v13, v16, s43, v20
    """)
    a(f"""
    v_lshrrev_b32 v7, 5, v0
    v_lshlrev_b32 v10, 10, v6
    v_lshl_add_u32 v10, v7, 6, v10
    v_lshrrev_b32 v4, 3, v0
    v_and_b32 v6, 7, v0
    v_bfe_u32 v8, v0, 4, 1
    v_lshlrev_b32 v9, 1, v8
    v_xor_b32 v6, v9, v6
    v_lshlrev_b32 v6, 4, v6
    v_lshl_add_u32 v4, v4, 10, v6
    v_bfe_u32 v6, v0, 2, 2
    v_lshl_add_u32 v7, v7, 3, v6
    v_lshlrev_b32 v7, 7, v7
    v_lshl_add_u32 v7, v8, 4, v7
    v_and_b32 v8, 1, v0
    v_lshl_add_u32 v7, v8, 6, v7
    v_bfe_u32 v8, v0, 1, 1
    v_lshl_add_u32 v7, v8, 3, v7
    v_lshrrev_b32 v6, 1, v6
    v_lshl_add_u32 v7, v6, 5, v7
    s_mul_i32 s46, s16, 6144
    s_add_u32 s46, s46, {STG}
    v_add_u32 v8, s46, v7
    v_xor_b32 v9, 32, v8
    s_lshl_b32 s47, s3, 7
    """)
    def wround(s0, n):
        for p in range(2 * n):
            a(f"s_add_u32 m0, s46, {p*1024}\ns_add_u32 s43, s47, {(2*s0+p)*8192}\nbuffer_load_dwordx4 v4, s[20:23], s43 offen lds")
        a("s_waitcnt vmcnt(0)")
        for s in range(n):
            for c in range(2):
                for e in range(2): a(f"ds_read_b64_tr_b16 {vr(WR+8*(s0+s)+4*c+2*e,2)}, v{8+c} offset:{s*2048+e*512}")
        a("s_waitcnt lgkmcnt(0)")
    wround(0, 3); wround(3, 3)
    block(5)
    wround(6, 2)
    block(6); block(7)
    a(f"""
    v_lshlrev_b32 v6, 7, v0
    H_F2:
    """)
    spin(a)
    a(f"""
    s_mov_b64 exec, 0xffff
    buffer_load_dwordx2 v[16:17], v6, s[28:31], s45 offen sc1
    s_waitcnt vmcnt(0)
    v_cmp_eq_u64 vcc, s[32:33], v[16:17]
    s_mov_b64 exec, -1
    s_cmp_eq_u32 vcc_lo, 0xffff
    s_cbranch_scc0 H_F2
    s_lshl_b32 s46, s34, 14
    v_add_u32 v8, s46, v7
    v_xor_b32 v9, 32, v8
    v_add_u32 v6, 0x10000, v8
    v_add_u32 v7, 0x10000, v9
    s_lshl_b32 s43, s35, 10
    s_add_u32 s46, s46, s43
    s_lshl_b32 s43, s35, 13
    s_add_u32 s47, s47, s43
    """)
    for k in range(3):
        wait_rel(5 + k, f"W{k}")
        for p in range(8):
            a(f"s_add_u32 m0, s46, {k*32768 + p*2048}\ns_add_u32 s43, s47, {(8+8*k+p)*16384}\nbuffer_load_dwordx4 v4, s[20:23], s43 offen lds")
    a(f"""
    s_lshl_b32 s43, s17, 3
    s_lshl_b32 s44, s19, 1
    s_add_u32 s43, s43, s44
    s_add_u32 s43, s43, s35
    s_lshl_b32 s44, s43, 16
    s_lshl_b32 s45, s34, 15
    s_add_u32 s44, s44, s45
    s_add_u32 s48, s44, {hex(O_OFF)}
    """)
    for g in range(1, 8): a(f"s_add_u32 s{48+g}, s48, {g*4096}")
    a(f"""
    s_lshl_b32 s43, s43, 15
    s_lshl_b32 s44, s3, 7
    s_add_u32 s43, s43, s44
    s_lshl_b32 s44, s34, 5
    s_add_u32 s43, s43, s44
    s_lshl_b32 s44, s16, 12
    s_add_u32 s44, s44, {XCH}
    v_add_u32 v4, s44, v1
    v_xor_b32 v5, 0x2000, v4
    s_waitcnt vmcnt(0)
    """)
    stamp(a, "hBBw")
    a("s_barrier")
    stamp(a, "hBB")
    if STAMPS: a("s_mov_b32 s101, 0x100000")
    def oload(g): return [f"buffer_load_dwordx4 {vr(OF+16*g+4*n,4)}, v1, s[28:31], s{48+g} offen offset:{n*1024} sc1" for n in range(4)]
    def check(g):
        f = OF + 16 * g
        L = [f"v_max3_u32 v11, v{f}, v{f+1}, v{f+2}"]
        for i in range(6): L.append(f"v_max3_u32 v11, v11, v{f+3+2*i}, v{f+4+2*i}")
        L += [f"v_max_u32 v11, v11, v{f+15}", "v_cmp_eq_u32 vcc, -1, v11"]
        return L
    def wreads(s):
        k, p = divmod(s - 8, 8)
        f = WF + 8 * (s & 1)
        return [f"ds_read_b64_tr_b16 {vr(f+4*c+2*e,2)}, v{(6 if k == 2 else 8)+c} offset:{(k&1)*32768+p*2048+e*512}" for c in range(2) for e in range(2)]
    for g in range(4):
        for x in oload(g): a(x)
    a("s_waitcnt vmcnt(12)")
    for x in check(0): a(x)
    a("s_cbranch_vccnz H_RETRY0\nH_GO0:")
    stamp(a, "hG0")
    for s in range(32):
        g = s >> 2
        w = WR + 8 * s if s < 8 else WF + 8 * (s & 1)
        M = [f"v_mfma_f32_32x32x16_bf16 {vr(ACC+16*c,16)}, {vr(w+4*c,4)}, {vr(OF+4*s,4)}, {vr(ACC+16*c,16) if s else 0}" for c in range(2)]
        if s >= 8: a("s_waitcnt lgkmcnt(0)")
        a(M[0])
        if 7 <= s < 31:
            for x in wreads(s + 1): a(x)
        if g < 4 and s % 4 < 2:
            for x in oload(g + 4)[2 * (s % 4):2 * (s % 4) + 2]: a(x)
        if s % 4 == 3 and g < 7:
            a(f"s_waitcnt vmcnt({min(12, 4 * (6 - g))})")
            for x in check(g + 1)[:5]: a(x)
        a(M[1])
        if s % 4 == 3 and g < 7:
            for x in check(g + 1)[5:]: a(x)
            a(f"s_cbranch_vccnz H_RETRY{g+1}\nH_GO{g+1}:")
            stamp(a, f"hG{g+1}")
    stamp(a, "hMF")
    a("s_cmp_eq_u32 s34, 0\ns_cbranch_scc1 H_B0\ns_nop 8")
    def xchg(keep):
        give = ACC + 16 * (1 - keep); kp = ACC + 16 * keep
        for i in range(4):
            for r in range(0, 4, 2): a(f"v_pk_mul_f32 {vr(give+4*i+r,2)}, {vr(give+4*i+r,2)}, v[12:13] op_sel:[0,1]")
            a(f"ds_write_b128 v4, {vr(give+4*i,4)} offset:{i*1024}")
        a("s_waitcnt lgkmcnt(0)\ns_barrier")
        for i in range(4): a(f"ds_read_b128 {vr(OF+4*i,4)}, v5 offset:{i*1024}")
        for i in range(4):
            a(f"s_waitcnt lgkmcnt({3-i})")
            for r in range(0, 4, 2): a(f"v_pk_fma_f32 {vr(kp+4*i+r,2)}, {vr(kp+4*i+r,2)}, v[12:13], {vr(OF+4*i+r,2)} op_sel:[0,1,0]")
            for r in range(2): a(f"v_cvt_pk_bf16_f32 v{WF+2*i+r}, v{kp+4*i+2*r}, v{kp+4*i+2*r+1}")
    xchg(1)
    a("s_branch H_ST\nH_B0:\ns_nop 9")
    xchg(0)
    a(f"""
    H_ST:
    """)
    stamp(a, "hXC"); stamp(a, "hnSPIN")
    a(f"""
    buffer_store_dwordx4 {vr(WF,4)}, v10, s[24:27], s43 offen
    buffer_store_dwordx4 {vr(WF+4,4)}, v10, s[24:27], s43 offen offset:16
    """)
    if STAMPS: a("s_add_u32 s16, s16, 4")
    stamp_flush(a)
    if PROBE: a("s_mov_b32 s100, s32")
    probe_end(a, "h")
    a("s_endpgm")
    for g in range(8):
        a(f"H_RETRY{g}:")
        spin(a)
        for gg in range(g, min(g + 4, 8)):
            for x in oload(gg): a(x)
        a("s_waitcnt vmcnt(0)")
        for x in check(g): a(x)
        a(f"s_cbranch_vccnz H_RETRY{g}\ns_branch H_GO{g}")

def main(out):
    ref = open(f"cdna_kernels/{NAME}.s.ref").read().split("\n")
    hdr = [l for l in ref if l.startswith(";") and "@launch" not in l and "Override launch" not in l and "grid=ceil" not in l]
    lab = NAME + "_kernel"
    a = Asm()
    a(f".globl {lab}\n.p2align 8\n.type {lab},@function\n{lab}:")
    prologue(a); compute_phase1(a); attention(a); helper(a)
    desc = f""".p2align 6
.amdhsa_kernel {lab}
  .amdhsa_next_free_vgpr 256
  .amdhsa_next_free_sgpr 102
  .amdhsa_accum_offset 256
  .amdhsa_group_segment_fixed_size 0
  .amdhsa_kernarg_size 80
  .amdhsa_user_sgpr_count 2
  .amdhsa_user_sgpr_kernarg_segment_ptr 1
  .amdhsa_system_sgpr_workgroup_id_x 1
.end_amdhsa_kernel
"""
    if STAMPS: hdr = hdr + ["; stamps " + " | ".join(SETS[OPT["stamps"]])]
    s = "\n".join(hdr + ["; @launch grid=(256,1,1) block=(512,1,1) lds=163840"]) + '\n.amdgcn_target "amdgcn-amd-amdhsa--gfx950"\n.text\n' + a.text()
    s += '.section .rodata,"a"\n' + desc
    open(out, "w").write(s)

if __name__ == "__main__":
    args = [x for x in sys.argv[1:] if not x.startswith("--")]
    main(args[0] if args else f"cdna_kernels/{NAME}.s")
```
